```python
import torch

def _softmax(x, axis=-1):
    return torch.softmax(x, dim=axis)

def _gelu(x):
    return torch.nn.functional.gelu(x, approximate='tanh')

def _silu(x):
    return torch.nn.functional.silu(x)

def _sigmoid(x):
    return torch.sigmoid(x)

def _layernorm(x, axis=-1, eps=1e-05):
    m = x.mean(dim=axis, keepdim=True)
    v = x.var(dim=axis, keepdim=True, unbiased=False)
    return (x - m) / torch.sqrt(v + eps)

def _scatter_add(tgt, idx, src, axis=0):
    return tgt.clone().index_add_(axis, idx, src)

def _segment_sum(src, seg, n):
    out = torch.zeros((n,) + src.shape[1:], dtype=src.dtype)
    return out.index_add_(0, seg, src)

def _pad(x, pw):
    flat = tuple((v for pair in reversed(pw) for v in pair))
    return torch.nn.functional.pad(x, flat)
kernel_name = 'adaLN_cond__mha_block_cached__swiglu_ffn__decode'

def setup_inputs():

    _w = lambda a: (lambda t: t.to(torch.bfloat16) if t.is_floating_point() else t)(torch.as_tensor(a))

    def _A_setup():
        B, Sq, D = (4, 1, 576)
        H, Sk, Dh = (32, 4096, 128)
        return {'x': _w((lambda *s: torch.randn(*s, dtype=torch.bfloat16) * 0.1)(B, Sq, D)), 'k_cache': _w((lambda *s: torch.randn(*s, dtype=torch.bfloat16) * 0.8)(B, H, Sk, Dh)), 'v_cache': _w((lambda *s: torch.randn(*s, dtype=torch.bfloat16) * 1.6)(B, H, Sk, Dh)), 'wq': _w((lambda *s: torch.randn(*s, dtype=torch.bfloat16) * 0.8)(D, H * Dh) * D ** (-0.5)), 'wo': _w((lambda *s: torch.randn(*s, dtype=torch.bfloat16) * 1.6)(H * Dh, D) * (H * Dh) ** (-0.5))}
    _A_in = _A_setup()

    def _B_setup():
        B, S, D, F = (4, 1, 576, 4608)
        return {'x': _w((lambda *s: torch.randn(*s, dtype=torch.bfloat16) * 0.1)(B, S, D)), 'w_gate': _w((lambda *s: torch.randn(*s, dtype=torch.bfloat16) * 0.2)(D, F)), 'w_up': _w((lambda *s: torch.randn(*s, dtype=torch.bfloat16) * 0.2)(D, F)), 'w_down': _w((lambda *s: torch.randn(*s, dtype=torch.bfloat16) * 0.2)(F, D))}
    _B_in = _B_setup()
    return {'A_x': _A_in['x'], 'A_k_cache': _A_in['k_cache'], 'A_v_cache': _A_in['v_cache'], 'A_wq': _A_in['wq'], 'A_wo': _A_in['wo'], 'B_x': _B_in['x'], 'B_w_gate': _B_in['w_gate'], 'B_w_up': _B_in['w_up'], 'B_w_down': _B_in['w_down'], 'c': _w((lambda *s: torch.randn(*s, dtype=torch.bfloat16) * 0.4)(4, 576) * 8.0), 'w_mod': _w((lambda *s: torch.randn(*s, dtype=torch.bfloat16) * 0.4)(576, 6 * 576) * 576 ** (-0.5) * 8.0)}

def reference(A_x, A_k_cache, A_v_cache, A_wq, A_wo, B_x, B_w_gate, B_w_up, B_w_down, c, w_mod):

    def _A_ref(x, k_cache, v_cache, wq, wo):
        B, Sq, D = x.shape
        H, Dh = (32, 128)
        q = (lambda x, *d: x.permute(*d))((x @ wq).reshape(B, Sq, H, Dh), 0, 2, 1, 3)
        scores = torch.einsum('bhqd,bhkd->bhqk', q, k_cache) * Dh ** (-0.5)
        p = _softmax(scores, axis=-1)
        o = torch.einsum('bhqk,bhkd->bhqd', p, v_cache)
        return (lambda x, *d: x.permute(*d))(o, 0, 2, 1, 3).reshape(B, Sq, H * Dh) @ wo

    def _B_ref(x, w_gate, w_up, w_down):
        g = _silu(x @ w_gate)
        u = x @ w_up
        return g * u @ w_down
    x = A_x
    mod = (_silu(c) @ w_mod).reshape(c.shape[0], 6, 1, -1)
    sa, ca, ga, sb, cb, gb = (mod[:, 0].clone(), mod[:, 1].clone(), mod[:, 2].clone(), mod[:, 3].clone(), mod[:, 4].clone(), mod[:, 5].clone())
    h = _layernorm(x, axis=-1) * (1 + ca) + sa
    x = x + ga * _A_ref(h, A_k_cache, A_v_cache, A_wq, A_wo)
    h = _layernorm(x, axis=-1) * (1 + cb) + sb
    x = x + gb * _B_ref(h, B_w_gate, B_w_up, B_w_down)
    return x
```

```python
import sys

NAME = "adaLN_cond__mha_block_cached__swiglu_ffn__decode"
OUT = f"cdna_kernels/{NAME}.s"

WS_MOD = 0x000000
WS_Q = 0x040000
WS_PART = 0x080000
WS_ACC1 = 0x110000
WS_ACC2 = WS_ACC1 + 9216
NSPLIT = 8
KEYS_PER_WG = 4096 // NSPLIT
LOG2E = 1.4426950408889634
QSCALE = (128 ** -0.5) * LOG2E

def f2h(x):
    import struct
    return "0x%08x" % struct.unpack("<I", struct.pack("<f", x))[0]

class Kern:
    def __init__(self, name):
        self.name = name
        self.l = []
        self.nv = 256
        self.ns = 102
    def __call__(self, s):
        for x in s.strip().split("\n"):
            self.l.append("    " + x.strip())
    def label(self, s):
        self.l.append(f"{s}:")
    def text(self):
        h = [f".globl {self.name}", ".p2align 8", f".type {self.name},@function", f"{self.name}:"]
        return "\n".join(h + self.l)
    def desc(self):
        return "\n".join([
            f".amdhsa_kernel {self.name}",
            f"  .amdhsa_next_free_vgpr {self.nv}",
            f"  .amdhsa_next_free_sgpr {self.ns}",
            f"  .amdhsa_accum_offset {((self.nv + 3) // 4) * 4}",
            "  .amdhsa_group_segment_fixed_size 0",
            "  .amdhsa_kernarg_size 112",
            "  .amdhsa_user_sgpr_count 2",
            "  .amdhsa_user_sgpr_kernarg_segment_ptr 1",
            "  .amdhsa_system_sgpr_workgroup_id_x 1",
            ".end_amdhsa_kernel"])

def srd(k, d, base, nbytes):
    k(f"s_mov_b32 s{d}, s{base}")
    k(f"s_mov_b32 s{d+1}, s{base+1}")
    k(f"s_mov_b32 s{d+2}, {nbytes}")
    k(f"s_mov_b32 s{d+3}, 0x00020000")

def row16_allreduce(k, regs, op="add"):
    ins = "v_add_f32_dpp" if op == "add" else "v_max_f32_dpp"
    for ctl in ["quad_perm:[1,0,3,2]", "quad_perm:[2,3,0,1]", "row_half_mirror", "row_mirror"]:
        if len(regs) < 3:
            k("s_nop 1")
        for r in regs:
            k(f"{ins} v{r}, v{r}, v{r} {ctl} row_mask:0xf bank_mask:0xf")

def wave_sum(k, r, sa):
    row16_allreduce(k, [r])
    k("s_nop 1")
    for i in range(4):
        k(f"v_readlane_b32 s{sa+i}, v{r}, {16*i}")
    k("s_nop 3")
    k(f"v_mov_b32 v{r}, s{sa}")
    for i in range(1, 4):
        k(f"v_add_f32 v{r}, s{sa+i}, v{r}")

def silu(k, x, t):
    k(f"v_mul_f32 v{t}, {f2h(-LOG2E)}, v{x}")
    k(f"v_exp_f32 v{t}, v{t}")
    k("s_nop 0")
    k(f"v_add_f32 v{t}, 1.0, v{t}")
    k(f"v_rcp_f32 v{t}, v{t}")
    k("s_nop 0")
    k(f"v_mul_f32 v{x}, v{x}, v{t}")

def gemv_fma(k, W, A, ACC, nrows, wait_base, first=True):
    T = 250
    for i in range(nrows):
        if wait_base is not None:
            k(f"s_waitcnt vmcnt({wait_base + nrows-1-i})")
        for d in range(4):
            w = W + 4*i + d
            k(f"v_lshlrev_b32 v{T}, 16, v{w}")
            k(f"v_and_b32 v{T+1}, 0xffff0000, v{w}")
            for b in range(4):
                a = A + 4*i + b
                if first and i == 0:
                    k(f"v_mul_f32 v{ACC+b*8+2*d}, v{a}, v{T}")
                    k(f"v_mul_f32 v{ACC+b*8+2*d+1}, v{a}, v{T+1}")
                else:
                    k(f"v_fmac_f32 v{ACC+b*8+2*d}, v{a}, v{T}")
                    k(f"v_fmac_f32 v{ACC+b*8+2*d+1}, v{a}, v{T+1}")

def gemv128_tail(k, N, ws_off):
    k("s_waitcnt lgkmcnt(0)")
    k("s_barrier")
    k("s_mul_i32 s26, s24, 144*16")
    k("v_lshlrev_b32 v3, 4, v2")
    k("v_add_u32 v3, s26, v3")
    for i in range(9):
        k(f"ds_read_b128 v[{100+4*i}:{103+4*i}], v3 offset:{256*i}")
    k("s_waitcnt lgkmcnt(0)")
    gemv_fma(k, 64, 100, 200, 9, 0)
    k("v_lshlrev_b32 v3, 11, v2")
    k("v_lshlrev_b32 v4, 5, v1")
    k("v_add_u32 v3, v3, v4")
    for b in range(4):
        k(f"ds_write_b128 v3, v[{200+b*8}:{203+b*8}] offset:{0x4000+b*512}")
        k(f"ds_write_b128 v3, v[{204+b*8}:{207+b*8}] offset:{0x4000+b*512+16}")
    k("s_waitcnt lgkmcnt(0)")
    k("s_barrier")
    k("v_lshlrev_b32 v3, 2, v0")
    for half in range(2):
        for g in range(16):
            k(f"ds_read_b32 v{160+half*16+g}, v3 offset:{0x4000+g*2048+half*1024}")
    k("s_waitcnt lgkmcnt(0)")
    for half in range(2):
        for g in range(1, 16):
            k(f"v_add_f32 v{160+half*16}, v{160+half*16}, v{160+half*16+g}")
    k("v_lshrrev_b32 v4, 7, v0")
    k("v_and_b32 v5, 127, v0")
    k(f"s_mul_i32 s26, s24, {4*N*4}")
    k("s_lshl_b32 s27, s25, 9")
    k("s_add_u32 s26, s26, s27")
    k(f"s_add_u32 s26, s26, {ws_off}")
    k(f"s_mov_b32 s27, {N*4}")
    k("v_mul_lo_u32 v4, v4, s27")
    k("v_lshl_add_u32 v4, v5, 2, v4")
    k("v_add_u32 v4, s26, v4")
    k("global_store_dword v4, v160, s[8:9]")
    k(f"s_mov_b32 s27, {2*N*4}")
    k("v_add_u32 v4, s27, v4")
    k("global_store_dword v4, v176, s[8:9]")

def weights128_issue(k, srd_reg, rowstride):
    k(f"s_mov_b32 s27, {rowstride}")
    k("v_mul_lo_u32 v3, v2, s27")
    k("v_lshl_add_u32 v3, v1, 4, v3")
    k(f"s_mul_i32 s20, s24, {144*rowstride}")
    k("s_lshl_b32 s21, s25, 8")
    k("s_add_u32 s20, s20, s21")
    for i in range(9):
        k(f"buffer_load_dwordx4 v[{64+4*i}:{67+4*i}], v3, s[{srd_reg}:{srd_reg+3}], s20 offen")
        if i < 8:
            k(f"s_add_u32 s20, s20, {16*rowstride}")

def k1():
    k = Kern("k1_mod_kernel")
    k("""s_load_dwordx2 s[4:5], s[0:1], 72
         s_load_dwordx2 s[6:7], s[0:1], 80
         s_load_dwordx2 s[8:9], s[0:1], 104
         s_cmp_ge_u32 s2, 108
         s_cbranch_scc1 k1_end
         s_and_b32 s24, s2, 3
         s_lshr_b32 s25, s2, 2
         v_and_b32 v1, 15, v0
         v_lshrrev_b32 v2, 4, v0
         v_lshrrev_b32 v5, 6, v0
         v_and_b32 v6, 63, v0
         s_waitcnt lgkmcnt(0)""")
    srd(k, 12, 6, 576*6912)
    k("v_mul_u32_u24 v7, 576, v5")
    k("v_add_u32 v7, v7, v6")
    k("v_lshlrev_b32 v7, 1, v7")
    for j in range(9):
        k(f"global_load_ushort v{32+j}, v7, s[4:5] offset:{128*j}")
    weights128_issue(k, 12, 6912)
    k("s_waitcnt vmcnt(9)")
    for j in range(9):
        k(f"v_lshlrev_b32 v{32+j}, 16, v{32+j}")
        silu(k, 32+j, 48)
    k("v_lshlrev_b32 v7, 4, v6")
    k("v_lshl_add_u32 v7, v5, 2, v7")
    for j in range(9):
        k(f"ds_write_b32 v7, v{32+j} offset:{1024*j}")
    gemv128_tail(k, 3456, WS_MOD)
    k("s_cmp_lg_u32 s2, 0")
    k("s_cbranch_scc1 k1_end")
    k(f"s_add_u32 s28, s8, {WS_ACC1}")
    k("s_addc_u32 s29, s9, 0")
    srd(k, 16, 28, 18432)
    k("v_mov_b32 v8, 0\nv_mov_b32 v9, 0\nv_mov_b32 v10, 0\nv_mov_b32 v11, 0")
    k("v_lshlrev_b32 v7, 4, v0")
    for j in range(5):
        k(f"buffer_store_dwordx4 v[8:11], v7, s[16:19], 0 offen offset:0")
        if j < 4:
            k("v_add_u32 v7, 0x1000, v7")
    k.label("k1_end")
    k("s_endpgm")
    return k

def ln_rows(k, X, n, tmp, sa):
    k(f"v_add_f32 v{tmp}, v{X}, v{X+1}")
    for j in range(2, 9):
        k(f"v_add_f32 v{tmp}, v{tmp}, v{X+j}")
    wave_sum(k, tmp, sa)
    k(f"v_mul_f32 v{tmp}, {f2h(1.0/576)}, v{tmp}")
    for j in range(9):
        k(f"v_sub_f32 v{X+j}, v{X+j}, v{tmp}")
    k(f"v_mul_f32 v{tmp}, v{X}, v{X}")
    for j in range(1, 9):
        k(f"v_fmac_f32 v{tmp}, v{X+j}, v{X+j}")
    wave_sum(k, tmp, sa)
    k(f"v_mov_b32 v{tmp+1}, {f2h(1e-5)}")
    k(f"v_fmac_f32 v{tmp+1}, {f2h(1.0/576)}, v{tmp}")
    k(f"v_rsq_f32 v{tmp+1}, v{tmp+1}")
    k("s_nop 0")
    for j in range(9):
        k(f"v_mul_f32 v{X+j}, v{X+j}, v{tmp+1}")

def load_mod(k, dst, col0, voff):
    for ks in range(4):
        for j in range(9):
            off = WS_MOD + ks*4*3456*4 + col0*4 + 256*j
            k(f"s_add_u32 s30, s8, {off}")
            k("s_addc_u32 s31, s9, 0")
            k(f"global_load_dword v{dst+ks*9+j}, v{voff}, s[30:31]")

def sum_mod(k, dst):
    for ks in range(1, 4):
        for j in range(9):
            k(f"v_add_f32 v{dst+j}, v{dst+j}, v{dst+ks*9+j}")

def k2():
    k = Kern("k2_q_kernel")
    k("""s_load_dwordx2 s[4:5], s[0:1], 0
         s_load_dwordx2 s[6:7], s[0:1], 24
         s_load_dwordx2 s[8:9], s[0:1], 104
         s_cmp_ge_u32 s2, 128
         s_cbranch_scc1 k2_end
         s_and_b32 s24, s2, 3
         s_lshr_b32 s25, s2, 2
         v_and_b32 v1, 15, v0
         v_lshrrev_b32 v2, 4, v0
         v_lshrrev_b32 v5, 6, v0
         v_and_b32 v6, 63, v0
         s_waitcnt lgkmcnt(0)""")
    srd(k, 12, 6, 576*8192)
    k("v_mul_u32_u24 v7, 576, v5")
    k("v_add_u32 v7, v7, v6")
    k("v_lshlrev_b32 v7, 1, v7")
    for j in range(9):
        k(f"global_load_ushort v{32+j}, v7, s[4:5] offset:{128*j}")
    k("v_mul_u32_u24 v7, 3456, v5")
    k("v_add_u32 v7, v7, v6")
    k("v_lshlrev_b32 v7, 2, v7")
    load_mod(k, 160, 0, 7)
    load_mod(k, 200, 576, 7)
    weights128_issue(k, 12, 8192)
    k("s_waitcnt vmcnt(9)")
    for j in range(9):
        k(f"v_lshlrev_b32 v{32+j}, 16, v{32+j}")
    sum_mod(k, 160)
    sum_mod(k, 200)
    ln_rows(k, 32, 9, 48, 40)
    for j in range(9):
        k(f"v_add_f32 v{200+j}, 1.0, v{200+j}")
        k(f"v_fma_f32 v{32+j}, v{32+j}, v{200+j}, v{160+j}")
    k("v_lshlrev_b32 v7, 4, v6")
    k("v_lshl_add_u32 v7, v5, 2, v7")
    for j in range(9):
        k(f"ds_write_b32 v7, v{32+j} offset:{1024*j}")
    gemv128_tail(k, 4096, WS_Q)
    k.label("k2_end")
    k("s_endpgm")
    return k

def k3():
    k = Kern("k3_attn_kernel")
    k.nv = 128
    NB = KEYS_PER_WG // 4 // 16
    k(f"""s_load_dwordx2 s[4:5], s[0:1], 8
         s_load_dwordx2 s[6:7], s[0:1], 16
         s_load_dwordx2 s[8:9], s[0:1], 104
         s_cmp_ge_u32 s2, {128*NSPLIT}
         s_cbranch_scc1 k3_end
         v_lshrrev_b32 v5, 6, v0
         v_and_b32 v6, 63, v0
         s_nop 0
         v_readfirstlane_b32 s20, v5
         s_lshr_b32 s21, s2, {NSPLIT.bit_length()-1}
         s_and_b32 s22, s2, {NSPLIT-1}
         s_lshl_b32 s23, s21, 20
         s_mul_i32 s24, s22, {KEYS_PER_WG*256}
         s_add_u32 s23, s23, s24
         s_mul_i32 s24, s20, {KEYS_PER_WG*64}
         s_add_u32 s23, s23, s24
         s_waitcnt lgkmcnt(0)
         s_add_u32 s4, s4, s23
         s_addc_u32 s5, s5, 0
         s_add_u32 s6, s6, s23
         s_addc_u32 s7, s7, 0
         v_lshlrev_b32 v1, 4, v6""")
    def ldK(buf, voff_extra=0):
        for r in range(4):
            k(f"global_load_dwordx4 v[{buf+4*r}:{buf+4*r+3}], v1, s[4:5] offset:{1024*r}")
    def ldV(buf):
        for r in range(4):
            k(f"global_load_dwordx4 v[{buf+4*r}:{buf+4*r+3}], v1, s[6:7] offset:{1024*r}")
    KA, KB, VA, VB = 32, 48, 64, 80
    k("v_and_b32 v2, 15, v6")
    k("v_lshlrev_b32 v2, 5, v2")
    k("s_lshl_b32 s25, s21, 9")
    k(f"s_add_u32 s25, s25, {WS_Q}")
    k("s_add_u32 s26, s8, s25")
    k("s_addc_u32 s27, s9, 0")
    for ks in range(4):
        k(f"global_load_dwordx4 v[{96+8*ks}:{99+8*ks}], v2, s[26:27]")
        k(f"global_load_dwordx4 v[{100+8*ks}:{103+8*ks}], v2, s[26:27] offset:16")
        if ks < 3:
            k(f"s_add_u32 s26, s26, {4*4096*4}")
            k("s_addc_u32 s27, s27, 0")
    ldK(KA); ldV(VA)
    k("v_add_u32 v1, 0x1000, v1")
    ldK(KB); ldV(VB)
    k("v_add_u32 v1, 0x1000, v1")
    k("s_waitcnt vmcnt(16)")
    for j in range(8):
        k(f"v_add_f32 v{8+j}, v{96+j}, v{104+j}")
        k(f"v_add_f32 v{112+j}, v{112+j}, v{120+j}")
        k(f"v_add_f32 v{8+j}, v{8+j}, v{112+j}")
        k(f"v_mul_f32 v{8+j}, {f2h(QSCALE)}, v{8+j}")
        k(f"v_mov_b32 v{16+j}, 0")
    k("v_mov_b32 v24, 0xff800000")
    k("v_mov_b32 v25, 0")
    S = 96
    for blk in range(NB):
        KBUF = KA if blk % 2 == 0 else KB
        VBUF = VA if blk % 2 == 0 else VB
        pre = blk + 2 < NB
        nxt = 8 if blk + 1 < NB else 0
        k(f"s_waitcnt vmcnt({4 + nxt})")
        for j in range(8):
            for r in range(4):
                w = KBUF + 4*r + j//2
                t = 100 + r
                if j % 2 == 0:
                    k(f"v_lshlrev_b32 v{t}, 16, v{w}")
                else:
                    k(f"v_and_b32 v{t}, 0xffff0000, v{w}")
                if j == 0:
                    k(f"v_mul_f32 v{S+r}, v{8+j}, v{t}")
                else:
                    k(f"v_fmac_f32 v{S+r}, v{8+j}, v{t}")
        if pre:
            ldK(KBUF)
        row16_allreduce(k, [S, S+1, S+2, S+3])
        k(f"v_max3_f32 v104, v{S}, v{S+1}, v24")
        k(f"v_max3_f32 v104, v{S+2}, v{S+3}, v104")
        k("v_sub_f32 v105, v24, v104")
        k("v_exp_f32 v105, v105")
        for r in range(4):
            k(f"v_sub_f32 v{S+r}, v{S+r}, v104")
        for r in range(4):
            k(f"v_exp_f32 v{S+r}, v{S+r}")
        k("v_mov_b32 v24, v104")
        k("v_mul_f32 v25, v25, v105")
        for j in range(8):
            k(f"v_mul_f32 v{16+j}, v{16+j}, v105")
        for r in range(4):
            k(f"v_add_f32 v25, v25, v{S+r}")
        nk = 4 if pre else 0
        k(f"s_waitcnt vmcnt({nxt + nk})")
        for r in range(4):
            for j in range(8):
                w = VBUF + 4*r + j//2
                t = 100 + (j % 4)
                if j % 2 == 0:
                    k(f"v_lshlrev_b32 v{t}, 16, v{w}")
                else:
                    k(f"v_and_b32 v{t}, 0xffff0000, v{w}")
                k(f"v_fmac_f32 v{16+j}, v{S+r}, v{t}")
        if pre:
            ldV(VBUF)
            k("v_add_u32 v1, 0x1000, v1")
    k("v_lshrrev_b32 v2, 4, v0")
    k("v_and_b32 v3, 15, v0")
    k("v_lshlrev_b32 v4, 9, v2")
    k("v_lshl_add_u32 v4, v3, 5, v4")
    k("ds_write_b128 v4, v[16:19]")
    k("ds_write_b128 v4, v[20:23] offset:16")
    k("v_lshlrev_b32 v4, 3, v2")
    k("v_cmp_eq_u32 vcc, 0, v3")
    k("s_and_saveexec_b64 s[30:31], vcc")
    k("ds_write_b64 v4, v[24:25] offset:8192")
    k("s_mov_b64 exec, s[30:31]")
    k("s_waitcnt lgkmcnt(0)")
    k("s_barrier")
    k("v_cmp_gt_u32 vcc, 128, v0")
    k("s_and_saveexec_b64 s[30:31], vcc")
    k("s_cbranch_execz k3_end")
    k("v_mov_b32 v4, 0")
    for i in range(16):
        k(f"ds_read_b64 v[{32+2*i}:{33+2*i}], v4 offset:{8192+8*i}")
    k("v_lshlrev_b32 v5, 2, v0")
    for i in range(16):
        k(f"ds_read_b32 v{64+i}, v5 offset:{512*i}")
    k("s_waitcnt lgkmcnt(0)")
    k("v_max_f32 v8, v32, v34")
    for i in range(2, 16):
        k(f"v_max_f32 v8, v8, v{32+2*i}")
    for i in range(16):
        k(f"v_sub_f32 v{32+2*i}, v{32+2*i}, v8")
    for i in range(16):
        k(f"v_exp_f32 v{32+2*i}, v{32+2*i}")
    k("v_mov_b32 v9, 0\nv_mov_b32 v10, 0")
    for i in range(16):
        k(f"v_fmac_f32 v9, v{32+2*i}, v{33+2*i}")
        k(f"v_fmac_f32 v10, v{32+2*i}, v{64+i}")
    k("s_mul_i32 s25, s2, 528")
    k(f"s_add_u32 s25, s25, {WS_PART}")
    k("s_add_u32 s26, s8, s25")
    k("s_addc_u32 s27, s9, 0")
    k("global_store_dword v5, v10, s[26:27] offset:16")
    k("v_cmp_eq_u32 vcc, 0, v0")
    k("s_and_saveexec_b64 s[28:29], vcc")
    k("global_store_dwordx2 v4, v[8:9], s[26:27]")
    k.label("k3_end")
    k("s_endpgm")
    return k

def div72(k, dst_q, dst_r, src):
    k(f"v_mul_u32_u24 v{dst_q}, 911, v{src}")
    k(f"v_lshrrev_b32 v{dst_q}, 16, v{dst_q}")
    k(f"v_mul_u32_u24 v{dst_r}, 72, v{dst_q}")
    k(f"v_sub_u32 v{dst_r}, v{src}, v{dst_r}")

def red576_atomic(k, ACC, lds_red, ws_acc, rg, jj):
    k(f"v_mul_u32_u24 v3, {4*576*4}, v{rg}")
    k(f"v_lshl_add_u32 v3, v{jj}, 5, v3")
    for b in range(4):
        k(f"ds_write_b128 v3, v[{ACC+b*8}:{ACC+b*8+3}] offset:{lds_red+b*2304}")
        k(f"ds_write_b128 v3, v[{ACC+b*8+4}:{ACC+b*8+7}] offset:{lds_red+b*2304+16}")
    k("s_waitcnt lgkmcnt(0)")
    k("s_barrier")
    k(f"v_mul_u32_u24 v3, 2304, v{rg}")
    k(f"v_lshl_add_u32 v3, v{jj}, 5, v3")
    for g in range(4):
        k(f"ds_read_b128 v[{ACC+g*8}:{ACC+g*8+3}], v3 offset:{lds_red+g*9216}")
        k(f"ds_read_b128 v[{ACC+g*8+4}:{ACC+g*8+7}], v3 offset:{lds_red+g*9216+16}")
    k("s_waitcnt lgkmcnt(0)")
    for g in range(1, 4):
        for j in range(8):
            k(f"v_add_f32 v{ACC+j}, v{ACC+j}, v{ACC+g*8+j}")
    k(f"s_add_u32 s30, s8, {ws_acc}")
    k("s_addc_u32 s31, s9, 0")
    for j in range(8):
        k(f"global_atomic_add_f32 v3, v{ACC+j}, s[30:31] offset:{4*j}")

def k4():
    k = Kern("k4_wo_kernel")
    k("""s_load_dwordx2 s[6:7], s[0:1], 32
         s_load_dwordx2 s[8:9], s[0:1], 104
         s_cmp_ge_u32 s2, 64
         s_cbranch_scc1 k4_end
         s_lshr_b32 s20, s2, 1
         s_and_b32 s21, s2, 1
         s_waitcnt lgkmcnt(0)""")
    div72(k, 1, 2, 0)
    k("s_lshl_b32 s22, s2, 6")
    k("s_mul_i32 s22, s22, 1152")
    k("s_add_u32 s6, s6, s22")
    k("s_addc_u32 s7, s7, 0")
    k("v_lshlrev_b32 v3, 4, v0")
    k("v_lshrrev_b32 v4, 6, v0")
    k("v_and_b32 v5, 63, v0")
    k("v_cmp_gt_u32 vcc, 256, v0")
    k("s_and_saveexec_b64 s[30:31], vcc")
    k("s_cbranch_execz k4_skip1")
    k(f"v_mul_u32_u24 v6, {32*NSPLIT*528}, v4")
    k(f"s_mul_i32 s23, s20, {NSPLIT*528}")
    k(f"s_add_u32 s23, s23, {WS_PART}")
    k("s_add_u32 s24, s8, s23")
    k("s_addc_u32 s25, s9, 0")
    k("s_lshl_b32 s26, s21, 8")
    k("v_lshl_add_u32 v7, v5, 2, v6")
    k("v_add_u32 v7, s26, v7")
    for s in range(NSPLIT):
        k(f"global_load_dwordx2 v[{32+2*s}:{33+2*s}], v6, s[24:25] offset:{528*s}")
        k(f"global_load_dword v{48+s}, v7, s[24:25] offset:{528*s+16}")
    k("s_waitcnt vmcnt(0)")
    k("v_max_f32 v8, v32, v34")
    for s in range(2, NSPLIT):
        k(f"v_max_f32 v8, v8, v{32+2*s}")
    for s in range(NSPLIT):
        k(f"v_sub_f32 v{32+2*s}, v{32+2*s}, v8")
    for s in range(NSPLIT):
        k(f"v_exp_f32 v{32+2*s}, v{32+2*s}")
    k("v_mov_b32 v9, 0\nv_mov_b32 v10, 0")
    for s in range(NSPLIT):
        k(f"v_fmac_f32 v9, v{32+2*s}, v{33+2*s}")
        k(f"v_fmac_f32 v10, v{32+2*s}, v{48+s}")
    k("v_rcp_f32 v9, v9")
    k("s_nop 0")
    k("v_mul_f32 v10, v10, v9")
    k("v_lshlrev_b32 v6, 4, v5")
    k("v_lshl_add_u32 v6, v4, 2, v6")
    k("ds_write_b32 v6, v10")
    k.label("k4_skip1")
    k("s_mov_b64 exec, s[30:31]")
    for i in range(16):
        k(f"global_load_dwordx4 v[{64+4*i}:{67+4*i}], v3, s[6:7]")
        if i < 15:
            k("s_add_u32 s6, s6, 4608")
            k("s_addc_u32 s7, s7, 0")
    k("s_waitcnt lgkmcnt(0)")
    k("s_barrier")
    k("v_lshlrev_b32 v4, 4, v1")
    for i in range(16):
        k(f"ds_read_b128 v[{160+4*i}:{163+4*i}], v4 offset:{64*i}")
    k("s_waitcnt lgkmcnt(0)")
    gemv_fma(k, 64, 160, 128, 16, 0)
    red576_atomic(k, 128, 0x1000, WS_ACC1, 1, 2)
    k.label("k4_end")
    k("s_endpgm")
    return k

def k5():
    k = Kern("k5_ffn_kernel")
    k("""s_load_dwordx2 s[4:5], s[0:1], 0
         s_load_dwordx2 s[10:11], s[0:1], 48
         s_load_dwordx2 s[12:13], s[0:1], 56
         s_load_dwordx2 s[14:15], s[0:1], 64
         s_load_dwordx2 s[8:9], s[0:1], 104
         s_cmp_ge_u32 s2, 144
         s_cbranch_scc1 k5_end
         v_lshrrev_b32 v5, 6, v0
         v_and_b32 v6, 63, v0
         s_waitcnt lgkmcnt(0)""")
    div72(k, 1, 2, 0)
    k("v_cmp_gt_u32 vcc, 256, v0")
    k("s_and_saveexec_b64 s[34:35], vcc")
    k("s_cbranch_execz k5_skip1")
    k("v_mul_u32_u24 v7, 576, v5")
    k("v_add_u32 v7, v7, v6")
    k("v_lshlrev_b32 v3, 1, v7")
    for j in range(9):
        k(f"global_load_ushort v{32+j}, v3, s[4:5] offset:{128*j}")
    k("v_lshlrev_b32 v3, 2, v7")
    k(f"s_add_u32 s30, s8, {WS_ACC1}")
    k("s_addc_u32 s31, s9, 0")
    for j in range(9):
        k(f"global_load_dword v{44+j}, v3, s[30:31] offset:{256*j}")
    k("v_mul_u32_u24 v7, 3456, v5")
    k("v_add_u32 v7, v7, v6")
    k("v_lshlrev_b32 v7, 2, v7")
    load_mod(k, 100, 1152, 7)
    load_mod(k, 140, 1728, 7)
    load_mod(k, 180, 2304, 7)
    k("s_waitcnt vmcnt(0)")
    sum_mod(k, 100); sum_mod(k, 140); sum_mod(k, 180)
    for j in range(9):
        k(f"v_lshlrev_b32 v{32+j}, 16, v{32+j}")
        k(f"v_fmac_f32 v{32+j}, v{100+j}, v{44+j}")
    ln_rows(k, 32, 9, 60, 40)
    for j in range(9):
        k(f"v_add_f32 v{180+j}, 1.0, v{180+j}")
        k(f"v_fma_f32 v{32+j}, v{32+j}, v{180+j}, v{140+j}")
    k("v_lshlrev_b32 v7, 4, v6")
    k("v_lshl_add_u32 v7, v5, 2, v7")
    for j in range(9):
        k(f"ds_write_b32 v7, v{32+j} offset:{1024*j}")
    k.label("k5_skip1")
    k("s_mov_b64 exec, s[34:35]")
    k("v_lshrrev_b32 v4, 2, v0")
    k("v_and_b32 v7, 3, v0")
    k("s_mov_b32 s27, 9216")
    k("v_mul_lo_u32 v3, v4, s27")
    k("v_lshl_add_u32 v3, v7, 4, v3")
    k("s_lshl_b32 s20, s2, 6")
    k("s_add_u32 s10, s10, s20\ns_addc_u32 s11, s11, 0")
    k("s_add_u32 s12, s12, s20\ns_addc_u32 s13, s13, 0")
    for i in range(8):
        k(f"global_load_dwordx4 v[{64+4*i}:{67+4*i}], v3, s[10:11]")
        k(f"global_load_dwordx4 v[{96+4*i}:{99+4*i}], v3, s[12:13]")
        if i < 7:
            k(f"s_add_u32 s10, s10, {72*9216}\ns_addc_u32 s11, s11, 0")
            k(f"s_add_u32 s12, s12, {72*9216}\ns_addc_u32 s13, s13, 0")
    k("s_waitcnt lgkmcnt(0)")
    k("s_barrier")
    k("v_lshlrev_b32 v3, 4, v4")
    for i in range(8):
        k(f"ds_read_b128 v[{32+4*i}:{35+4*i}], v3 offset:{72*16*i}")
    k("s_waitcnt lgkmcnt(0)")
    T = 250
    for i in range(8):
        for gu, (W, ACC) in enumerate(((64, 128), (96, 160))):
            k(f"s_waitcnt vmcnt({15 - 2*i - gu})")
            for d in range(4):
                w = W + 4*i + d
                k(f"v_lshlrev_b32 v{T}, 16, v{w}")
                k(f"v_and_b32 v{T+1}, 0xffff0000, v{w}")
                for b in range(4):
                    a = 32 + 4*i + b
                    op = "v_mul_f32" if i == 0 else "v_fmac_f32"
                    k(f"{op} v{ACC+b*8+2*d}, v{a}, v{T}")
                    k(f"{op} v{ACC+b*8+2*d+1}, v{a}, v{T+1}")
    k("s_mul_i32 s20, s2, 36864")
    k("s_add_u32 s14, s14, s20\ns_addc_u32 s15, s15, 0")
    k("v_lshlrev_b32 v3, 4, v0")
    for i in range(8):
        k(f"global_load_dwordx4 v[{64+4*i}:{67+4*i}], v3, s[14:15]")
        if i < 7:
            k("s_add_u32 s14, s14, 4608\ns_addc_u32 s15, s15, 0")
    RED = 0x3000
    k("v_lshlrev_b32 v3, 10, v4")
    k("v_lshl_add_u32 v3, v7, 5, v3")
    for gu in range(2):
        for b in range(4):
            r = 128 + gu*32 + b*8
            k(f"ds_write_b128 v3, v[{r}:{r+3}] offset:{RED+gu*512+b*128}")
            k(f"ds_write_b128 v3, v[{r+4}:{r+7}] offset:{RED+gu*512+b*128+16}")
    k("s_waitcnt lgkmcnt(0)")
    k("s_barrier")
    k("v_cmp_gt_u32 vcc, 256, v0")
    k("s_and_saveexec_b64 s[34:35], vcc")
    k("s_cbranch_execz k5_skip2")
    k("v_lshlrev_b32 v3, 2, v0")
    k(f"v_add_u32 v11, {RED+1024*36}, v3")
    for g in range(72):
        if g < 36:
            k(f"ds_read_b32 v{128+g}, v3 offset:{RED+1024*g}")
        else:
            k(f"ds_read_b32 v{128+g}, v11 offset:{1024*(g-36)}")
    k("s_waitcnt lgkmcnt(0)")
    for g in range(1, 72):
        k(f"v_add_f32 v128, v128, v{128+g}")
    S2 = 0x2800
    k(f"ds_write_b32 v3, v128 offset:{S2}")
    k.label("k5_skip2")
    k("s_mov_b64 exec, s[34:35]")
    k("s_waitcnt lgkmcnt(0)")
    k("s_barrier")
    k("v_cmp_gt_u32 vcc, 128, v0")
    k("s_and_saveexec_b64 s[34:35], vcc")
    k("s_cbranch_execz k5_skip3")
    k(f"ds_read_b32 v8, v3 offset:{S2}")
    k(f"ds_read_b32 v9, v3 offset:{S2+512}")
    k("s_waitcnt lgkmcnt(0)")
    silu(k, 8, 10)
    k("v_mul_f32 v8, v8, v9")
    A2 = 0x2400
    k("v_and_b32 v9, 31, v0")
    k("v_lshrrev_b32 v10, 5, v0")
    k("v_lshlrev_b32 v9, 4, v9")
    k("v_lshl_add_u32 v9, v10, 2, v9")
    k(f"ds_write_b32 v9, v8 offset:{A2}")
    k.label("k5_skip3")
    k("s_mov_b64 exec, s[34:35]")
    k("s_waitcnt lgkmcnt(0)")
    k("s_barrier")
    k("v_lshlrev_b32 v4, 4, v1")
    for i in range(8):
        k(f"ds_read_b128 v[{32+4*i}:{35+4*i}], v4 offset:{A2+64*i}")
    k("s_waitcnt lgkmcnt(0)")
    gemv_fma(k, 64, 32, 128, 8, 0)
    red576_atomic(k, 128, RED, WS_ACC2, 1, 2)
    k.label("k5_end")
    k("s_endpgm")
    return k

def k6():
    k = Kern("k6_fin_kernel")
    k.nv = 32
    k("""s_load_dwordx2 s[4:5], s[0:1], 0
         s_load_dwordx2 s[6:7], s[0:1], 88
         s_load_dwordx2 s[8:9], s[0:1], 104
         s_cmp_ge_u32 s2, 4
         s_cbranch_scc1 k6_end
         s_waitcnt lgkmcnt(0)""")
    k("s_mul_i32 s20, s2, 576")
    k("v_add_u32 v1, s20, v0")
    k("v_lshlrev_b32 v2, 1, v1")
    k("global_load_ushort v8, v2, s[4:5]")
    k("v_lshlrev_b32 v3, 2, v1")
    k(f"s_add_u32 s30, s8, {WS_ACC1}\ns_addc_u32 s31, s9, 0")
    k("global_load_dword v9, v3, s[30:31]")
    k("global_load_dword v10, v3, s[30:31] offset:0")
    k(f"s_add_u32 s30, s8, {WS_ACC2}\ns_addc_u32 s31, s9, 0")
    k("global_load_dword v10, v3, s[30:31]")
    k("s_mul_i32 s20, s2, 3456")
    k("v_add_u32 v4, s20, v0")
    k("v_lshlrev_b32 v4, 2, v4")
    for ks in range(4):
        for i, col in enumerate((1152, 2880)):
            off = WS_MOD + ks*4*3456*4 + col*4
            k(f"s_add_u32 s30, s8, {off}\ns_addc_u32 s31, s9, 0")
            k(f"global_load_dword v{16+i*4+ks}, v4, s[30:31]")
    k("s_waitcnt vmcnt(0)")
    for i in range(2):
        for ks in range(1, 4):
            k(f"v_add_f32 v{16+i*4}, v{16+i*4}, v{16+i*4+ks}")
    k("v_lshlrev_b32 v8, 16, v8")
    k("v_fmac_f32 v8, v16, v9")
    k("v_fmac_f32 v8, v20, v10")
    k("v_cvt_pk_bf16_f32 v8, v8, v8")
    k("global_store_short v2, v8, s[6:7]")
    k.label("k6_end")
    k("s_endpgm")
    return k

def main():
    ks = [k1(), k2(), k3(), k4(), k5(), k6()]
    launches = [("k1_mod_kernel", 108, 256, 49152), ("k2_q_kernel", 128, 256, 49152),
                ("k3_attn_kernel", 128*NSPLIT, 256, 8448), ("k4_wo_kernel", 64, 288, 0x1000+36864),
                ("k5_ffn_kernel", 144, 288, 0x3000+73728), ("k6_fin_kernel", 4, 576, 0)]
    out = []
    for n, g, b, lds in launches:
        out.append(f"; @launch kernel={n} grid=({g},1,1) block=({b},1,1) lds={lds}")
    out.append('.amdgcn_target "amdgcn-amd-amdhsa--gfx950"')
    out.append(".text")
    for k in ks:
        out.append(k.text())
    out.append('.section .rodata,"a"')
    for k in ks:
        out.append(".p2align 6")
        out.append(k.desc())
    open(OUT, "w").write("\n".join(out) + "\n")
    print("wrote", OUT, sum(len(k.l) for k in ks), "lines")

main()
```

```python
import sys

NAME = "adaLN_cond__mha_block_cached__swiglu_ffn__decode"
OUT = f"cdna_kernels/{NAME}.s"

WS_MOD = 0x000000
WS_Q = 0x040000
WS_PART = 0x080000
WS_ACC1 = 0x110000
WS_ACC2 = WS_ACC1 + 9216
WS_P1 = 0x120000
WS_P2 = 0x200000
NSPLIT = 8
KEYS_PER_WG = 4096 // NSPLIT
LOG2E = 1.4426950408889634
QSCALE = (128 ** -0.5) * LOG2E

def f2h(x):
    import struct
    return "0x%08x" % struct.unpack("<I", struct.pack("<f", x))[0]

class Kern:
    def __init__(self, name):
        self.name = name
        self.l = []
        self.nv = 256
        self.ns = 102
    def __call__(self, s):
        for x in s.strip().split("\n"):
            self.l.append("    " + x.strip())
    def label(self, s):
        self.l.append(f"{s}:")
    def text(self):
        h = [f".globl {self.name}", ".p2align 8", f".type {self.name},@function", f"{self.name}:"]
        return "\n".join(h + self.l)
    def desc(self):
        return "\n".join([
            f".amdhsa_kernel {self.name}",
            f"  .amdhsa_next_free_vgpr {self.nv}",
            f"  .amdhsa_next_free_sgpr {self.ns}",
            f"  .amdhsa_accum_offset {((self.nv + 3) // 4) * 4}",
            "  .amdhsa_group_segment_fixed_size 0",
            "  .amdhsa_kernarg_size 112",
            "  .amdhsa_user_sgpr_count 2",
            "  .amdhsa_user_sgpr_kernarg_segment_ptr 1",
            "  .amdhsa_system_sgpr_workgroup_id_x 1",
            ".end_amdhsa_kernel"])

def srd(k, d, base, nbytes):
    k(f"s_mov_b32 s{d}, s{base}")
    k(f"s_mov_b32 s{d+1}, s{base+1}")
    k(f"s_mov_b32 s{d+2}, {nbytes}")
    k(f"s_mov_b32 s{d+3}, 0x00020000")

def row16_allreduce(k, regs, op="add"):
    ins = "v_add_f32_dpp" if op == "add" else "v_max_f32_dpp"
    for ctl in ["quad_perm:[1,0,3,2]", "quad_perm:[2,3,0,1]", "row_half_mirror", "row_mirror"]:
        if len(regs) < 3:
            k("s_nop 1")
        for r in regs:
            k(f"{ins} v{r}, v{r}, v{r} {ctl} row_mask:0xf bank_mask:0xf")

def wave_sum(k, r, sa):
    row16_allreduce(k, [r])
    k("s_nop 1")
    for i in range(4):
        k(f"v_readlane_b32 s{sa+i}, v{r}, {16*i}")
    k("s_nop 3")
    k(f"v_mov_b32 v{r}, s{sa}")
    for i in range(1, 4):
        k(f"v_add_f32 v{r}, s{sa+i}, v{r}")

def silu(k, x, t):
    k(f"v_mul_f32 v{t}, {f2h(-LOG2E)}, v{x}")
    k(f"v_exp_f32 v{t}, v{t}")
    k("s_nop 0")
    k(f"v_add_f32 v{t}, 1.0, v{t}")
    k(f"v_rcp_f32 v{t}, v{t}")
    k("s_nop 0")
    k(f"v_mul_f32 v{x}, v{x}, v{t}")

def gemv_fma(k, W, A, ACC, nrows, wait_base, first=True):
    T = 250
    for i in range(nrows):
        if wait_base is not None:
            k(f"s_waitcnt vmcnt({wait_base + nrows-1-i})")
        for d in range(4):
            w = W + 4*i + d
            k(f"v_lshlrev_b32 v{T}, 16, v{w}")
            k(f"v_and_b32 v{T+1}, 0xffff0000, v{w}")
            for b in range(4):
                a = A + 4*i + b
                if first and i == 0:
                    k(f"v_mul_f32 v{ACC+b*8+2*d}, v{a}, v{T}")
                    k(f"v_mul_f32 v{ACC+b*8+2*d+1}, v{a}, v{T+1}")
                else:
                    k(f"v_fmac_f32 v{ACC+b*8+2*d}, v{a}, v{T}")
                    k(f"v_fmac_f32 v{ACC+b*8+2*d+1}, v{a}, v{T+1}")

def gemv128_tail(k, N, ws_off):
    k("s_waitcnt lgkmcnt(0)")
    k("s_barrier")
    k("s_mul_i32 s26, s24, 144*16")
    k("v_lshlrev_b32 v3, 4, v2")
    k("v_add_u32 v3, s26, v3")
    for i in range(9):
        k(f"ds_read_b128 v[{100+4*i}:{103+4*i}], v3 offset:{256*i}")
    k("s_waitcnt lgkmcnt(0)")
    gemv_fma(k, 64, 100, 200, 9, 0)
    k("v_lshlrev_b32 v3, 11, v2")
    k("v_lshlrev_b32 v4, 5, v1")
    k("v_add_u32 v3, v3, v4")
    for b in range(4):
        k(f"ds_write_b128 v3, v[{200+b*8}:{203+b*8}] offset:{0x4000+b*512}")
        k(f"ds_write_b128 v3, v[{204+b*8}:{207+b*8}] offset:{0x4000+b*512+16}")
    k("s_waitcnt lgkmcnt(0)")
    k("s_barrier")
    k("v_lshlrev_b32 v3, 2, v0")
    for half in range(2):
        for g in range(16):
            k(f"ds_read_b32 v{160+half*16+g}, v3 offset:{0x4000+g*2048+half*1024}")
    k("s_waitcnt lgkmcnt(0)")
    for half in range(2):
        for g in range(1, 16):
            k(f"v_add_f32 v{160+half*16}, v{160+half*16}, v{160+half*16+g}")
    k("v_lshrrev_b32 v4, 7, v0")
    k("v_and_b32 v5, 127, v0")
    k(f"s_mul_i32 s26, s24, {4*N*4}")
    k("s_lshl_b32 s27, s25, 9")
    k("s_add_u32 s26, s26, s27")
    k(f"s_add_u32 s26, s26, {ws_off}")
    k(f"s_mov_b32 s27, {N*4}")
    k("v_mul_lo_u32 v4, v4, s27")
    k("v_lshl_add_u32 v4, v5, 2, v4")
    k("v_add_u32 v4, s26, v4")
    k("global_store_dword v4, v160, s[8:9]")
    k(f"s_mov_b32 s27, {2*N*4}")
    k("v_add_u32 v4, s27, v4")
    k("global_store_dword v4, v176, s[8:9]")

def weights128_issue(k, srd_reg, rowstride):
    k(f"s_mov_b32 s27, {rowstride}")
    k("v_mul_lo_u32 v3, v2, s27")
    k("v_lshl_add_u32 v3, v1, 4, v3")
    k(f"s_mul_i32 s20, s24, {144*rowstride}")
    k("s_lshl_b32 s21, s25, 8")
    k("s_add_u32 s20, s20, s21")
    for i in range(9):
        k(f"buffer_load_dwordx4 v[{64+4*i}:{67+4*i}], v3, s[{srd_reg}:{srd_reg+3}], s20 offen")
        if i < 8:
            k(f"s_add_u32 s20, s20, {16*rowstride}")

def k1():
    k = Kern("k1_mod_kernel")
    k("""s_load_dwordx2 s[4:5], s[0:1], 72
         s_load_dwordx2 s[6:7], s[0:1], 80
         s_load_dwordx2 s[8:9], s[0:1], 104
         s_cmp_ge_u32 s2, 108
         s_cbranch_scc1 k1_end
         s_and_b32 s24, s2, 3
         s_lshr_b32 s25, s2, 2
         v_and_b32 v1, 15, v0
         v_lshrrev_b32 v2, 4, v0
         v_lshrrev_b32 v5, 6, v0
         v_and_b32 v6, 63, v0
         s_waitcnt lgkmcnt(0)""")
    srd(k, 12, 6, 576*6912)
    k("v_mul_u32_u24 v7, 576, v5")
    k("v_add_u32 v7, v7, v6")
    k("v_lshlrev_b32 v7, 1, v7")
    for j in range(9):
        k(f"global_load_ushort v{32+j}, v7, s[4:5] offset:{128*j}")
    weights128_issue(k, 12, 6912)
    k("s_waitcnt vmcnt(9)")
    for j in range(9):
        k(f"v_lshlrev_b32 v{32+j}, 16, v{32+j}")
        silu(k, 32+j, 48)
    k("v_lshlrev_b32 v7, 4, v6")
    k("v_lshl_add_u32 v7, v5, 2, v7")
    for j in range(9):
        k(f"ds_write_b32 v7, v{32+j} offset:{1024*j}")
    gemv128_tail(k, 3456, WS_MOD)
    k("s_cmp_lg_u32 s2, 0")
    k("s_cbranch_scc1 k1_end")
    k(f"s_add_u32 s28, s8, {WS_ACC1}")
    k("s_addc_u32 s29, s9, 0")
    srd(k, 16, 28, 18432)
    k("v_mov_b32 v8, 0\nv_mov_b32 v9, 0\nv_mov_b32 v10, 0\nv_mov_b32 v11, 0")
    k("v_lshlrev_b32 v7, 4, v0")
    for j in range(5):
        k(f"buffer_store_dwordx4 v[8:11], v7, s[16:19], 0 offen offset:0")
        if j < 4:
            k("v_add_u32 v7, 0x1000, v7")
    k.label("k1_end")
    k("s_endpgm")
    return k

def ln_rows(k, X, n, tmp, sa):
    k(f"v_add_f32 v{tmp}, v{X}, v{X+1}")
    for j in range(2, 9):
        k(f"v_add_f32 v{tmp}, v{tmp}, v{X+j}")
    wave_sum(k, tmp, sa)
    k(f"v_mul_f32 v{tmp}, {f2h(1.0/576)}, v{tmp}")
    for j in range(9):
        k(f"v_sub_f32 v{X+j}, v{X+j}, v{tmp}")
    k(f"v_mul_f32 v{tmp}, v{X}, v{X}")
    for j in range(1, 9):
        k(f"v_fmac_f32 v{tmp}, v{X+j}, v{X+j}")
    wave_sum(k, tmp, sa)
    k(f"v_mov_b32 v{tmp+1}, {f2h(1e-5)}")
    k(f"v_fmac_f32 v{tmp+1}, {f2h(1.0/576)}, v{tmp}")
    k(f"v_rsq_f32 v{tmp+1}, v{tmp+1}")
    k("s_nop 0")
    for j in range(9):
        k(f"v_mul_f32 v{X+j}, v{X+j}, v{tmp+1}")

def load_mod(k, dst, col0, voff):
    for ks in range(4):
        for j in range(9):
            off = WS_MOD + ks*4*3456*4 + col0*4 + 256*j
            k(f"s_add_u32 s30, s8, {off}")
            k("s_addc_u32 s31, s9, 0")
            k(f"global_load_dword v{dst+ks*9+j}, v{voff}, s[30:31]")

def sum_mod(k, dst):
    for ks in range(1, 4):
        for j in range(9):
            k(f"v_add_f32 v{dst+j}, v{dst+j}, v{dst+ks*9+j}")

def k2():
    k = Kern("k2_q_kernel")
    k("""s_load_dwordx2 s[4:5], s[0:1], 0
         s_load_dwordx2 s[6:7], s[0:1], 24
         s_load_dwordx2 s[8:9], s[0:1], 104
         s_cmp_ge_u32 s2, 128
         s_cbranch_scc1 k2_end
         s_and_b32 s24, s2, 3
         s_lshr_b32 s25, s2, 2
         v_and_b32 v1, 15, v0
         v_lshrrev_b32 v2, 4, v0
         v_lshrrev_b32 v5, 6, v0
         v_and_b32 v6, 63, v0
         s_waitcnt lgkmcnt(0)""")
    srd(k, 12, 6, 576*8192)
    k("v_mul_u32_u24 v7, 576, v5")
    k("v_add_u32 v7, v7, v6")
    k("v_lshlrev_b32 v7, 1, v7")
    for j in range(9):
        k(f"global_load_ushort v{32+j}, v7, s[4:5] offset:{128*j}")
    k("v_mul_u32_u24 v7, 3456, v5")
    k("v_add_u32 v7, v7, v6")
    k("v_lshlrev_b32 v7, 2, v7")
    load_mod(k, 160, 0, 7)
    load_mod(k, 200, 576, 7)
    weights128_issue(k, 12, 8192)
    k("s_waitcnt vmcnt(9)")
    for j in range(9):
        k(f"v_lshlrev_b32 v{32+j}, 16, v{32+j}")
    sum_mod(k, 160)
    sum_mod(k, 200)
    ln_rows(k, 32, 9, 48, 40)
    for j in range(9):
        k(f"v_add_f32 v{200+j}, 1.0, v{200+j}")
        k(f"v_fma_f32 v{32+j}, v{32+j}, v{200+j}, v{160+j}")
    k("v_lshlrev_b32 v7, 4, v6")
    k("v_lshl_add_u32 v7, v5, 2, v7")
    for j in range(9):
        k(f"ds_write_b32 v7, v{32+j} offset:{1024*j}")
    gemv128_tail(k, 4096, WS_Q)
    k.label("k2_end")
    k("s_endpgm")
    return k

def k3():
    k = Kern("k3_attn_kernel")
    k.nv = 128
    NB = KEYS_PER_WG // 4 // 16
    k(f"""s_load_dwordx2 s[4:5], s[0:1], 8
         s_load_dwordx2 s[6:7], s[0:1], 16
         s_load_dwordx2 s[8:9], s[0:1], 104
         s_cmp_ge_u32 s2, {128*NSPLIT}
         s_cbranch_scc1 k3_end
         v_lshrrev_b32 v5, 6, v0
         v_and_b32 v6, 63, v0
         s_nop 0
         v_readfirstlane_b32 s20, v5
         s_lshr_b32 s21, s2, {NSPLIT.bit_length()-1}
         s_and_b32 s22, s2, {NSPLIT-1}
         s_lshl_b32 s23, s21, 20
         s_mul_i32 s24, s22, {KEYS_PER_WG*256}
         s_add_u32 s23, s23, s24
         s_mul_i32 s24, s20, {KEYS_PER_WG*64}
         s_add_u32 s23, s23, s24
         s_waitcnt lgkmcnt(0)
         s_add_u32 s4, s4, s23
         s_addc_u32 s5, s5, 0
         s_add_u32 s6, s6, s23
         s_addc_u32 s7, s7, 0
         v_lshlrev_b32 v1, 4, v6
         s_lshr_b32 s24, s2, 3
         s_add_u32 s24, s24, s2
         s_add_u32 s24, s24, s20
         s_and_b32 s24, s24, 7
         s_lshl_b32 s24, s24, 12
         v_add_u32 v1, s24, v1""")
    def ldK(buf, voff_extra=0):
        for r in range(4):
            k(f"global_load_dwordx4 v[{buf+4*r}:{buf+4*r+3}], v1, s[4:5] offset:{1024*r} nt")
    def ldV(buf):
        for r in range(4):
            k(f"global_load_dwordx4 v[{buf+4*r}:{buf+4*r+3}], v1, s[6:7] offset:{1024*r} nt")
    KA, KB, VA, VB = 32, 48, 64, 80
    k("v_and_b32 v2, 15, v6")
    k("v_lshlrev_b32 v2, 5, v2")
    k("s_lshl_b32 s25, s21, 9")
    k(f"s_add_u32 s25, s25, {WS_Q}")
    k("s_add_u32 s26, s8, s25")
    k("s_addc_u32 s27, s9, 0")
    for ks in range(4):
        k(f"global_load_dwordx4 v[{96+8*ks}:{99+8*ks}], v2, s[26:27]")
        k(f"global_load_dwordx4 v[{100+8*ks}:{103+8*ks}], v2, s[26:27] offset:16")
        if ks < 3:
            k(f"s_add_u32 s26, s26, {4*4096*4}")
            k("s_addc_u32 s27, s27, 0")
    ldK(KA); ldV(VA)
    k("v_add_u32 v1, 0x1000, v1\nv_and_b32 v1, 0x7fff, v1")
    ldK(KB); ldV(VB)
    k("v_add_u32 v1, 0x1000, v1\nv_and_b32 v1, 0x7fff, v1")
    k("s_waitcnt vmcnt(16)")
    for j in range(8):
        k(f"v_add_f32 v{8+j}, v{96+j}, v{104+j}")
        k(f"v_add_f32 v{112+j}, v{112+j}, v{120+j}")
        k(f"v_add_f32 v{8+j}, v{8+j}, v{112+j}")
        k(f"v_mul_f32 v{8+j}, {f2h(QSCALE)}, v{8+j}")
        k(f"v_mov_b32 v{16+j}, 0")
    k("v_mov_b32 v24, 0xff800000")
    k("v_mov_b32 v25, 0")
    S = 96
    for blk in range(NB):
        KBUF = KA if blk % 2 == 0 else KB
        VBUF = VA if blk % 2 == 0 else VB
        pre = blk + 2 < NB
        nxt = 8 if blk + 1 < NB else 0
        k(f"s_waitcnt vmcnt({4 + nxt})")
        for j in range(8):
            for r in range(4):
                w = KBUF + 4*r + j//2
                t = 100 + r
                if j % 2 == 0:
                    k(f"v_lshlrev_b32 v{t}, 16, v{w}")
                else:
                    k(f"v_and_b32 v{t}, 0xffff0000, v{w}")
                if j == 0:
                    k(f"v_mul_f32 v{S+r}, v{8+j}, v{t}")
                else:
                    k(f"v_fmac_f32 v{S+r}, v{8+j}, v{t}")
        if pre:
            ldK(KBUF)
        row16_allreduce(k, [S, S+1, S+2, S+3])
        k(f"v_max3_f32 v104, v{S}, v{S+1}, v24")
        k(f"v_max3_f32 v104, v{S+2}, v{S+3}, v104")
        k("v_sub_f32 v105, v24, v104")
        k("v_exp_f32 v105, v105")
        for r in range(4):
            k(f"v_sub_f32 v{S+r}, v{S+r}, v104")
        for r in range(4):
            k(f"v_exp_f32 v{S+r}, v{S+r}")
        k("v_mov_b32 v24, v104")
        k("v_mul_f32 v25, v25, v105")
        for j in range(8):
            k(f"v_mul_f32 v{16+j}, v{16+j}, v105")
        for r in range(4):
            k(f"v_add_f32 v25, v25, v{S+r}")
        nk = 4 if pre else 0
        k(f"s_waitcnt vmcnt({nxt + nk})")
        for r in range(4):
            for j in range(8):
                w = VBUF + 4*r + j//2
                t = 100 + (j % 4)
                if j % 2 == 0:
                    k(f"v_lshlrev_b32 v{t}, 16, v{w}")
                else:
                    k(f"v_and_b32 v{t}, 0xffff0000, v{w}")
                k(f"v_fmac_f32 v{16+j}, v{S+r}, v{t}")
        if pre:
            ldV(VBUF)
            k("v_add_u32 v1, 0x1000, v1\nv_and_b32 v1, 0x7fff, v1")
    k("v_lshrrev_b32 v2, 4, v0")
    k("v_and_b32 v3, 15, v0")
    k("v_lshlrev_b32 v4, 9, v2")
    k("v_lshl_add_u32 v4, v3, 5, v4")
    k("ds_write_b128 v4, v[16:19]")
    k("ds_write_b128 v4, v[20:23] offset:16")
    k("v_lshlrev_b32 v4, 3, v2")
    k("v_cmp_eq_u32 vcc, 0, v3")
    k("s_and_saveexec_b64 s[30:31], vcc")
    k("ds_write_b64 v4, v[24:25] offset:8192")
    k("s_mov_b64 exec, s[30:31]")
    k("s_waitcnt lgkmcnt(0)")
    k("s_barrier")
    k("v_cmp_gt_u32 vcc, 128, v0")
    k("s_and_saveexec_b64 s[30:31], vcc")
    k("s_cbranch_execz k3_end")
    k("v_mov_b32 v4, 0")
    for i in range(16):
        k(f"ds_read_b64 v[{32+2*i}:{33+2*i}], v4 offset:{8192+8*i}")
    k("v_lshlrev_b32 v5, 2, v0")
    for i in range(16):
        k(f"ds_read_b32 v{64+i}, v5 offset:{512*i}")
    k("s_waitcnt lgkmcnt(0)")
    k("v_max_f32 v8, v32, v34")
    for i in range(2, 16):
        k(f"v_max_f32 v8, v8, v{32+2*i}")
    for i in range(16):
        k(f"v_sub_f32 v{32+2*i}, v{32+2*i}, v8")
    for i in range(16):
        k(f"v_exp_f32 v{32+2*i}, v{32+2*i}")
    k("v_mov_b32 v9, 0\nv_mov_b32 v10, 0")
    for i in range(16):
        k(f"v_fmac_f32 v9, v{32+2*i}, v{33+2*i}")
        k(f"v_fmac_f32 v10, v{32+2*i}, v{64+i}")
    k("s_mul_i32 s25, s2, 528")
    k(f"s_add_u32 s25, s25, {WS_PART}")
    k("s_add_u32 s26, s8, s25")
    k("s_addc_u32 s27, s9, 0")
    k("global_store_dword v5, v10, s[26:27] offset:16")
    k("v_cmp_eq_u32 vcc, 0, v0")
    k("s_and_saveexec_b64 s[28:29], vcc")
    k("global_store_dwordx2 v4, v[8:9], s[26:27]")
    k.label("k3_end")
    k("s_endpgm")
    return k

def div72(k, dst_q, dst_r, src):
    k(f"v_mul_u32_u24 v{dst_q}, 911, v{src}")
    k(f"v_lshrrev_b32 v{dst_q}, 16, v{dst_q}")
    k(f"v_mul_u32_u24 v{dst_r}, 72, v{dst_q}")
    k(f"v_sub_u32 v{dst_r}, v{src}, v{dst_r}")

def red576_atomic(k, ACC, lds_red, ws_acc, rg, jj):
    k(f"v_mul_u32_u24 v3, {4*576*4}, v{rg}")
    k(f"v_lshl_add_u32 v3, v{jj}, 5, v3")
    for b in range(4):
        k(f"ds_write_b128 v3, v[{ACC+b*8}:{ACC+b*8+3}] offset:{lds_red+b*2304}")
        k(f"ds_write_b128 v3, v[{ACC+b*8+4}:{ACC+b*8+7}] offset:{lds_red+b*2304+16}")
    k("s_waitcnt lgkmcnt(0)")
    k("s_barrier")
    k(f"v_mul_u32_u24 v3, 2304, v{rg}")
    k(f"v_lshl_add_u32 v3, v{jj}, 5, v3")
    for g in range(4):
        k(f"ds_read_b128 v[{ACC+g*8}:{ACC+g*8+3}], v3 offset:{lds_red+g*9216}")
        k(f"ds_read_b128 v[{ACC+g*8+4}:{ACC+g*8+7}], v3 offset:{lds_red+g*9216+16}")
    k("s_waitcnt lgkmcnt(0)")
    for g in range(1, 4):
        for j in range(8):
            k(f"v_add_f32 v{ACC+j}, v{ACC+j}, v{ACC+g*8+j}")
    k("s_mul_i32 s29, s2, 9216")
    k(f"s_add_u32 s29, s29, {ws_acc}")
    k("s_add_u32 s30, s8, s29")
    k("s_addc_u32 s31, s9, 0")
    k(f"global_store_dwordx4 v3, v[{ACC}:{ACC+3}], s[30:31]")
    k(f"global_store_dwordx4 v3, v[{ACC+4}:{ACC+7}], s[30:31] offset:16")

def k4():
    k = Kern("k4_wo_kernel")
    k("""s_load_dwordx2 s[6:7], s[0:1], 32
         s_load_dwordx2 s[8:9], s[0:1], 104
         s_cmp_ge_u32 s2, 64
         s_cbranch_scc1 k4_end
         s_lshr_b32 s20, s2, 1
         s_and_b32 s21, s2, 1
         s_waitcnt lgkmcnt(0)""")
    div72(k, 1, 2, 0)
    k("s_lshl_b32 s22, s2, 6")
    k("s_mul_i32 s22, s22, 1152")
    k("s_add_u32 s6, s6, s22")
    k("s_addc_u32 s7, s7, 0")
    k("v_lshlrev_b32 v3, 4, v0")
    k("v_lshrrev_b32 v4, 6, v0")
    k("v_and_b32 v5, 63, v0")
    k("v_cmp_gt_u32 vcc, 256, v0")
    k("s_and_saveexec_b64 s[30:31], vcc")
    k("s_cbranch_execz k4_skip1")
    k(f"v_mul_u32_u24 v6, {32*NSPLIT*528}, v4")
    k(f"s_mul_i32 s23, s20, {NSPLIT*528}")
    k(f"s_add_u32 s23, s23, {WS_PART}")
    k("s_add_u32 s24, s8, s23")
    k("s_addc_u32 s25, s9, 0")
    k("s_lshl_b32 s26, s21, 8")
    k("v_lshl_add_u32 v7, v5, 2, v6")
    k("v_add_u32 v7, s26, v7")
    for s in range(NSPLIT):
        k(f"global_load_dwordx2 v[{32+2*s}:{33+2*s}], v6, s[24:25] offset:{528*s}")
        k(f"global_load_dword v{48+s}, v7, s[24:25] offset:{528*s+16}")
    k("s_waitcnt vmcnt(0)")
    k("v_max_f32 v8, v32, v34")
    for s in range(2, NSPLIT):
        k(f"v_max_f32 v8, v8, v{32+2*s}")
    for s in range(NSPLIT):
        k(f"v_sub_f32 v{32+2*s}, v{32+2*s}, v8")
    for s in range(NSPLIT):
        k(f"v_exp_f32 v{32+2*s}, v{32+2*s}")
    k("v_mov_b32 v9, 0\nv_mov_b32 v10, 0")
    for s in range(NSPLIT):
        k(f"v_fmac_f32 v9, v{32+2*s}, v{33+2*s}")
        k(f"v_fmac_f32 v10, v{32+2*s}, v{48+s}")
    k("v_rcp_f32 v9, v9")
    k("s_nop 0")
    k("v_mul_f32 v10, v10, v9")
    k("v_lshlrev_b32 v6, 4, v5")
    k("v_lshl_add_u32 v6, v4, 2, v6")
    k("ds_write_b32 v6, v10")
    k.label("k4_skip1")
    k("s_mov_b64 exec, s[30:31]")
    for i in range(16):
        k(f"global_load_dwordx4 v[{64+4*i}:{67+4*i}], v3, s[6:7]")
        if i < 15:
            k("s_add_u32 s6, s6, 4608")
            k("s_addc_u32 s7, s7, 0")
    k("s_waitcnt lgkmcnt(0)")
    k("s_barrier")
    k("v_lshlrev_b32 v4, 4, v1")
    for i in range(16):
        k(f"ds_read_b128 v[{160+4*i}:{163+4*i}], v4 offset:{64*i}")
    k("s_waitcnt lgkmcnt(0)")
    gemv_fma(k, 64, 160, 128, 16, 0)
    red576_atomic(k, 128, 0x1000, WS_P1, 1, 2)
    k.label("k4_end")
    k("s_endpgm")
    return k

def k5():
    k = Kern("k5_ffn_kernel")
    k("""s_load_dwordx2 s[4:5], s[0:1], 0
         s_load_dwordx2 s[10:11], s[0:1], 48
         s_load_dwordx2 s[12:13], s[0:1], 56
         s_load_dwordx2 s[14:15], s[0:1], 64
         s_load_dwordx2 s[8:9], s[0:1], 104
         s_cmp_ge_u32 s2, 144
         s_cbranch_scc1 k5_end
         v_lshrrev_b32 v5, 6, v0
         v_and_b32 v6, 63, v0
         s_waitcnt lgkmcnt(0)""")
    div72(k, 1, 2, 0)
    k("v_cmp_gt_u32 vcc, 256, v0")
    k("s_and_saveexec_b64 s[34:35], vcc")
    k("s_cbranch_execz k5_skip1")
    k("v_mul_u32_u24 v7, 576, v5")
    k("v_add_u32 v7, v7, v6")
    k("v_lshlrev_b32 v3, 1, v7")
    for j in range(9):
        k(f"global_load_ushort v{32+j}, v3, s[4:5] offset:{128*j}")
    k("v_lshlrev_b32 v3, 2, v7")
    k(f"s_add_u32 s30, s8, {WS_ACC1}")
    k("s_addc_u32 s31, s9, 0")
    for j in range(9):
        k(f"global_load_dword v{44+j}, v3, s[30:31] offset:{256*j}")
    k("v_mul_u32_u24 v7, 3456, v5")
    k("v_add_u32 v7, v7, v6")
    k("v_lshlrev_b32 v7, 2, v7")
    load_mod(k, 100, 1152, 7)
    load_mod(k, 140, 1728, 7)
    load_mod(k, 180, 2304, 7)
    k("s_waitcnt vmcnt(0)")
    sum_mod(k, 100); sum_mod(k, 140); sum_mod(k, 180)
    for j in range(9):
        k(f"v_lshlrev_b32 v{32+j}, 16, v{32+j}")
        k(f"v_fmac_f32 v{32+j}, v{100+j}, v{44+j}")
    ln_rows(k, 32, 9, 60, 40)
    for j in range(9):
        k(f"v_add_f32 v{180+j}, 1.0, v{180+j}")
        k(f"v_fma_f32 v{32+j}, v{32+j}, v{180+j}, v{140+j}")
    k("v_lshlrev_b32 v7, 4, v6")
    k("v_lshl_add_u32 v7, v5, 2, v7")
    for j in range(9):
        k(f"ds_write_b32 v7, v{32+j} offset:{1024*j}")
    k.label("k5_skip1")
    k("s_mov_b64 exec, s[34:35]")
    k("v_lshrrev_b32 v4, 2, v0")
    k("v_and_b32 v7, 3, v0")
    k("s_mov_b32 s27, 9216")
    k("v_mul_lo_u32 v3, v4, s27")
    k("v_lshl_add_u32 v3, v7, 4, v3")
    k("s_lshl_b32 s20, s2, 6")
    k("s_add_u32 s10, s10, s20\ns_addc_u32 s11, s11, 0")
    k("s_add_u32 s12, s12, s20\ns_addc_u32 s13, s13, 0")
    for i in range(8):
        k(f"global_load_dwordx4 v[{64+4*i}:{67+4*i}], v3, s[10:11]")
        k(f"global_load_dwordx4 v[{96+4*i}:{99+4*i}], v3, s[12:13]")
        if i < 7:
            k(f"s_add_u32 s10, s10, {72*9216}\ns_addc_u32 s11, s11, 0")
            k(f"s_add_u32 s12, s12, {72*9216}\ns_addc_u32 s13, s13, 0")
    k("s_waitcnt lgkmcnt(0)")
    k("s_barrier")
    k("v_lshlrev_b32 v3, 4, v4")
    for i in range(8):
        k(f"ds_read_b128 v[{32+4*i}:{35+4*i}], v3 offset:{72*16*i}")
    k("s_waitcnt lgkmcnt(0)")
    T = 250
    for i in range(8):
        for gu, (W, ACC) in enumerate(((64, 128), (96, 160))):
            k(f"s_waitcnt vmcnt({15 - 2*i - gu})")
            for d in range(4):
                w = W + 4*i + d
                k(f"v_lshlrev_b32 v{T}, 16, v{w}")
                k(f"v_and_b32 v{T+1}, 0xffff0000, v{w}")
                for b in range(4):
                    a = 32 + 4*i + b
                    op = "v_mul_f32" if i == 0 else "v_fmac_f32"
                    k(f"{op} v{ACC+b*8+2*d}, v{a}, v{T}")
                    k(f"{op} v{ACC+b*8+2*d+1}, v{a}, v{T+1}")
    k("s_mul_i32 s20, s2, 36864")
    k("s_add_u32 s14, s14, s20\ns_addc_u32 s15, s15, 0")
    k("v_lshlrev_b32 v3, 4, v0")
    for i in range(8):
        k(f"global_load_dwordx4 v[{64+4*i}:{67+4*i}], v3, s[14:15]")
        if i < 7:
            k("s_add_u32 s14, s14, 4608\ns_addc_u32 s15, s15, 0")
    RED = 0x3000
    k("v_lshlrev_b32 v3, 10, v4")
    k("v_lshl_add_u32 v3, v7, 5, v3")
    for gu in range(2):
        for b in range(4):
            r = 128 + gu*32 + b*8
            k(f"ds_write_b128 v3, v[{r}:{r+3}] offset:{RED+gu*512+b*128}")
            k(f"ds_write_b128 v3, v[{r+4}:{r+7}] offset:{RED+gu*512+b*128+16}")
    k("s_waitcnt lgkmcnt(0)")
    k("s_barrier")
    k("v_cmp_gt_u32 vcc, 256, v0")
    k("s_and_saveexec_b64 s[34:35], vcc")
    k("s_cbranch_execz k5_skip2")
    k("v_lshlrev_b32 v3, 2, v0")
    k(f"v_add_u32 v11, {RED+1024*36}, v3")
    for g in range(72):
        if g < 36:
            k(f"ds_read_b32 v{128+g}, v3 offset:{RED+1024*g}")
        else:
            k(f"ds_read_b32 v{128+g}, v11 offset:{1024*(g-36)}")
    k("s_waitcnt lgkmcnt(0)")
    for g in range(1, 72):
        k(f"v_add_f32 v128, v128, v{128+g}")
    S2 = 0x2800
    k(f"ds_write_b32 v3, v128 offset:{S2}")
    k.label("k5_skip2")
    k("s_mov_b64 exec, s[34:35]")
    k("s_waitcnt lgkmcnt(0)")
    k("s_barrier")
    k("v_cmp_gt_u32 vcc, 128, v0")
    k("s_and_saveexec_b64 s[34:35], vcc")
    k("s_cbranch_execz k5_skip3")
    k(f"ds_read_b32 v8, v3 offset:{S2}")
    k(f"ds_read_b32 v9, v3 offset:{S2+512}")
    k("s_waitcnt lgkmcnt(0)")
    silu(k, 8, 10)
    k("v_mul_f32 v8, v8, v9")
    A2 = 0x2400
    k("v_and_b32 v9, 31, v0")
    k("v_lshrrev_b32 v10, 5, v0")
    k("v_lshlrev_b32 v9, 4, v9")
    k("v_lshl_add_u32 v9, v10, 2, v9")
    k(f"ds_write_b32 v9, v8 offset:{A2}")
    k.label("k5_skip3")
    k("s_mov_b64 exec, s[34:35]")
    k("s_waitcnt lgkmcnt(0)")
    k("s_barrier")
    k("v_lshlrev_b32 v4, 4, v1")
    for i in range(8):
        k(f"ds_read_b128 v[{32+4*i}:{35+4*i}], v4 offset:{A2+64*i}")
    k("s_waitcnt lgkmcnt(0)")
    gemv_fma(k, 64, 32, 128, 8, 0)
    red576_atomic(k, 128, RED, WS_P2, 1, 2)
    k.label("k5_end")
    k("s_endpgm")
    return k

def k4b():
    k = Kern("k4b_red_kernel")
    k.nv = 96
    k("""s_load_dwordx2 s[8:9], s[0:1], 104
         s_cmp_ge_u32 s2, 4
         s_cbranch_scc1 k4b_end
         s_mul_i32 s20, s2, 576
         v_add_u32 v1, s20, v0
         v_lshlrev_b32 v3, 2, v1
         s_waitcnt lgkmcnt(0)""")
    k(f"s_add_u32 s30, s8, {WS_P1}\ns_addc_u32 s31, s9, 0")
    for i in range(64):
        k(f"global_load_dword v{16+i}, v3, s[30:31]")
        k("s_add_u32 s30, s30, 9216\ns_addc_u32 s31, s31, 0")
    k("s_waitcnt vmcnt(0)")
    for i in range(1, 64):
        k(f"v_add_f32 v16, v16, v{16+i}")
    k(f"s_add_u32 s30, s8, {WS_ACC1}\ns_addc_u32 s31, s9, 0")
    k("global_store_dword v3, v16, s[30:31]")
    k.label("k4b_end")
    k("s_endpgm")
    return k

def k6():
    k = Kern("k6_fin_kernel")
    k.nv = 176
    k("""s_load_dwordx2 s[4:5], s[0:1], 0
         s_load_dwordx2 s[6:7], s[0:1], 88
         s_load_dwordx2 s[8:9], s[0:1], 104
         s_cmp_ge_u32 s2, 8
         s_cbranch_scc1 k6_end
         s_waitcnt lgkmcnt(0)""")
    k("s_mul_i32 s20, s2, 288")
    k("v_add_u32 v1, s20, v0")
    k("v_lshlrev_b32 v2, 1, v1")
    k("global_load_ushort v8, v2, s[4:5]")
    k("v_lshlrev_b32 v3, 2, v1")
    k(f"s_add_u32 s30, s8, {WS_ACC1}\ns_addc_u32 s31, s9, 0")
    k("global_load_dword v9, v3, s[30:31]")
    k("global_load_dword v10, v3, s[30:31] offset:0")
    k(f"s_add_u32 s30, s8, {WS_P2}\ns_addc_u32 s31, s9, 0")
    for i in range(144):
        k(f"global_load_dword v{32+i}, v3, s[30:31]")
        k("s_add_u32 s30, s30, 9216\ns_addc_u32 s31, s31, 0")
    k("s_lshr_b32 s21, s2, 1\ns_mul_i32 s20, s21, 3456\ns_and_b32 s21, s2, 1\ns_mul_i32 s21, s21, 288\ns_add_u32 s20, s20, s21")
    k("v_add_u32 v4, s20, v0")
    k("v_lshlrev_b32 v4, 2, v4")
    for ks in range(4):
        for i, col in enumerate((1152, 2880)):
            off = WS_MOD + ks*4*3456*4 + col*4
            k(f"s_add_u32 s30, s8, {off}\ns_addc_u32 s31, s9, 0")
            k(f"global_load_dword v{16+i*4+ks}, v4, s[30:31]")
    k("s_waitcnt vmcnt(0)")
    for i in range(2):
        for ks in range(1, 4):
            k(f"v_add_f32 v{16+i*4}, v{16+i*4}, v{16+i*4+ks}")
    k("v_mov_b32 v10, v32")
    for i in range(1, 144):
        k(f"v_add_f32 v10, v10, v{32+i}")
    k("v_lshlrev_b32 v8, 16, v8")
    k("v_fmac_f32 v8, v16, v9")
    k("v_fmac_f32 v8, v20, v10")
    k("v_cvt_pk_bf16_f32 v8, v8, v8")
    k("global_store_short v2, v8, s[6:7]")
    k.label("k6_end")
    k("s_endpgm")
    return k

def main():
    ks = [k1(), k2(), k3(), k4(), k4b(), k5(), k6()]
    launches = [("k1_mod_kernel", 108, 256, 49152), ("k2_q_kernel", 128, 256, 49152),
                ("k3_attn_kernel", 128*NSPLIT, 256, 8448), ("k4_wo_kernel", 64, 288, 0x1000+36864),
                ("k4b_red_kernel", 4, 576, 0), ("k5_ffn_kernel", 144, 288, 0x3000+73728), ("k6_fin_kernel", 8, 288, 0)]
    out = []
    for n, g, b, lds in launches:
        out.append(f"; @launch kernel={n} grid=({g},1,1) block=({b},1,1) lds={lds}")
    out.append('.amdgcn_target "amdgcn-amd-amdhsa--gfx950"')
    out.append(".text")
    for k in ks:
        out.append(k.text())
    out.append('.section .rodata,"a"')
    for k in ks:
        out.append(".p2align 6")
        out.append(k.desc())
    open(OUT, "w").write("\n".join(out) + "\n")
    print("wrote", OUT, sum(len(k.l) for k in ks), "lines")

main()
```

```python
import sys

NAME = "adaLN_cond__mha_block_cached__swiglu_ffn__decode"
OUT = f"cdna_kernels/{NAME}.s"

WS_MOD = 0x000000
WS_Q = 0x040000
WS_PART = 0x080000
WS_ACC1 = 0x110000
WS_ACC2 = WS_ACC1 + 9216
WS_P1 = 0x120000
WS_P2 = 0x200000
NSPLIT = 8
KEYS_PER_WG = 4096 // NSPLIT
LOG2E = 1.4426950408889634
QSCALE = (128 ** -0.5) * LOG2E

def f2h(x):
    import struct
    return "0x%08x" % struct.unpack("<I", struct.pack("<f", x))[0]

class Kern:
    def __init__(self, name):
        self.name = name
        self.l = []
        self.nv = 256
        self.ns = 102
    def __call__(self, s):
        for x in s.strip().split("\n"):
            self.l.append("    " + x.strip())
    def label(self, s):
        self.l.append(f"{s}:")
    def text(self):
        h = [f".globl {self.name}", ".p2align 8", f".type {self.name},@function", f"{self.name}:"]
        return "\n".join(h + self.l)
    def desc(self):
        return "\n".join([
            f".amdhsa_kernel {self.name}",
            f"  .amdhsa_next_free_vgpr {self.nv}",
            f"  .amdhsa_next_free_sgpr {self.ns}",
            f"  .amdhsa_accum_offset {((self.nv + 3) // 4) * 4}",
            "  .amdhsa_group_segment_fixed_size 0",
            "  .amdhsa_kernarg_size 112",
            "  .amdhsa_user_sgpr_count 2",
            "  .amdhsa_user_sgpr_kernarg_segment_ptr 1",
            "  .amdhsa_system_sgpr_workgroup_id_x 1",
            ".end_amdhsa_kernel"])

def srd(k, d, base, nbytes):
    k(f"s_mov_b32 s{d}, s{base}")
    k(f"s_mov_b32 s{d+1}, s{base+1}")
    k(f"s_mov_b32 s{d+2}, {nbytes}")
    k(f"s_mov_b32 s{d+3}, 0x00020000")

def row16_allreduce(k, regs, op="add"):
    ins = "v_add_f32_dpp" if op == "add" else "v_max_f32_dpp"
    for ctl in ["quad_perm:[1,0,3,2]", "quad_perm:[2,3,0,1]", "row_half_mirror", "row_mirror"]:
        if len(regs) < 3:
            k("s_nop 1")
        for r in regs:
            k(f"{ins} v{r}, v{r}, v{r} {ctl} row_mask:0xf bank_mask:0xf")

def wave_sum(k, r, sa):
    row16_allreduce(k, [r])
    k("s_nop 1")
    for i in range(4):
        k(f"v_readlane_b32 s{sa+i}, v{r}, {16*i}")
    k("s_nop 3")
    k(f"v_mov_b32 v{r}, s{sa}")
    for i in range(1, 4):
        k(f"v_add_f32 v{r}, s{sa+i}, v{r}")

def silu(k, x, t):
    k(f"v_mul_f32 v{t}, {f2h(-LOG2E)}, v{x}")
    k(f"v_exp_f32 v{t}, v{t}")
    k("s_nop 0")
    k(f"v_add_f32 v{t}, 1.0, v{t}")
    k(f"v_rcp_f32 v{t}, v{t}")
    k("s_nop 0")
    k(f"v_mul_f32 v{x}, v{x}, v{t}")

def gemv_fma(k, W, A, ACC, nrows, wait_base, first=True):
    T = 250
    for i in range(nrows):
        if wait_base is not None:
            k(f"s_waitcnt vmcnt({wait_base + nrows-1-i})")
        for d in range(4):
            w = W + 4*i + d
            k(f"v_lshlrev_b32 v{T}, 16, v{w}")
            k(f"v_and_b32 v{T+1}, 0xffff0000, v{w}")
            for b in range(4):
                a = A + 4*i + b
                if first and i == 0:
                    k(f"v_mul_f32 v{ACC+b*8+2*d}, v{a}, v{T}")
                    k(f"v_mul_f32 v{ACC+b*8+2*d+1}, v{a}, v{T+1}")
                else:
                    k(f"v_fmac_f32 v{ACC+b*8+2*d}, v{a}, v{T}")
                    k(f"v_fmac_f32 v{ACC+b*8+2*d+1}, v{a}, v{T+1}")

def gemv128_tail(k, N, ws_off):
    k("s_waitcnt lgkmcnt(0)")
    k("s_barrier")
    k("s_mul_i32 s26, s24, 144*16")
    k("v_lshlrev_b32 v3, 4, v2")
    k("v_add_u32 v3, s26, v3")
    for i in range(9):
        k(f"ds_read_b128 v[{100+4*i}:{103+4*i}], v3 offset:{256*i}")
    k("s_waitcnt lgkmcnt(0)")
    gemv_fma(k, 64, 100, 200, 9, 0)
    k("v_lshlrev_b32 v3, 11, v2")
    k("v_lshlrev_b32 v4, 5, v1")
    k("v_add_u32 v3, v3, v4")
    for b in range(4):
        k(f"ds_write_b128 v3, v[{200+b*8}:{203+b*8}] offset:{0x4000+b*512}")
        k(f"ds_write_b128 v3, v[{204+b*8}:{207+b*8}] offset:{0x4000+b*512+16}")
    k("s_waitcnt lgkmcnt(0)")
    k("s_barrier")
    k("v_lshlrev_b32 v3, 2, v0")
    for half in range(2):
        for g in range(16):
            k(f"ds_read_b32 v{160+half*16+g}, v3 offset:{0x4000+g*2048+half*1024}")
    k("s_waitcnt lgkmcnt(0)")
    for half in range(2):
        for g in range(1, 16):
            k(f"v_add_f32 v{160+half*16}, v{160+half*16}, v{160+half*16+g}")
    k("v_lshrrev_b32 v4, 7, v0")
    k("v_and_b32 v5, 127, v0")
    k(f"s_mul_i32 s26, s24, {4*N*4}")
    k("s_lshl_b32 s27, s25, 9")
    k("s_add_u32 s26, s26, s27")
    k(f"s_add_u32 s26, s26, {ws_off}")
    k(f"s_mov_b32 s27, {N*4}")
    k("v_mul_lo_u32 v4, v4, s27")
    k("v_lshl_add_u32 v4, v5, 2, v4")
    k("v_add_u32 v4, s26, v4")
    k("global_store_dword v4, v160, s[8:9]")
    k(f"s_mov_b32 s27, {2*N*4}")
    k("v_add_u32 v4, s27, v4")
    k("global_store_dword v4, v176, s[8:9]")

def weights128_issue(k, srd_reg, rowstride):
    k(f"s_mov_b32 s27, {rowstride}")
    k("v_mul_lo_u32 v3, v2, s27")
    k("v_lshl_add_u32 v3, v1, 4, v3")
    k(f"s_mul_i32 s20, s24, {144*rowstride}")
    k("s_lshl_b32 s21, s25, 8")
    k("s_add_u32 s20, s20, s21")
    for i in range(9):
        k(f"buffer_load_dwordx4 v[{64+4*i}:{67+4*i}], v3, s[{srd_reg}:{srd_reg+3}], s20 offen nt")
        if i < 8:
            k(f"s_add_u32 s20, s20, {16*rowstride}")

def k1():
    k = Kern("k1_mod_kernel")
    k("""s_load_dwordx2 s[4:5], s[0:1], 72
         s_load_dwordx2 s[6:7], s[0:1], 80
         s_load_dwordx2 s[8:9], s[0:1], 104
         s_cmp_ge_u32 s2, 108
         s_cbranch_scc1 k1_end
         s_and_b32 s24, s2, 3
         s_lshr_b32 s25, s2, 2
         v_and_b32 v1, 15, v0
         v_lshrrev_b32 v2, 4, v0
         v_lshrrev_b32 v5, 6, v0
         v_and_b32 v6, 63, v0
         s_waitcnt lgkmcnt(0)""")
    srd(k, 12, 6, 576*6912)
    k("v_mul_u32_u24 v7, 576, v5")
    k("v_add_u32 v7, v7, v6")
    k("v_lshlrev_b32 v7, 1, v7")
    for j in range(9):
        k(f"global_load_ushort v{32+j}, v7, s[4:5] offset:{128*j}")
    weights128_issue(k, 12, 6912)
    k("s_waitcnt vmcnt(9)")
    for j in range(9):
        k(f"v_lshlrev_b32 v{32+j}, 16, v{32+j}")
        silu(k, 32+j, 48)
    k("v_lshlrev_b32 v7, 4, v6")
    k("v_lshl_add_u32 v7, v5, 2, v7")
    for j in range(9):
        k(f"ds_write_b32 v7, v{32+j} offset:{1024*j}")
    gemv128_tail(k, 3456, WS_MOD)
    k("s_cmp_lg_u32 s2, 0")
    k("s_cbranch_scc1 k1_end")
    k(f"s_add_u32 s28, s8, {WS_ACC1}")
    k("s_addc_u32 s29, s9, 0")
    srd(k, 16, 28, 18432)
    k("v_mov_b32 v8, 0\nv_mov_b32 v9, 0\nv_mov_b32 v10, 0\nv_mov_b32 v11, 0")
    k("v_lshlrev_b32 v7, 4, v0")
    for j in range(5):
        k(f"buffer_store_dwordx4 v[8:11], v7, s[16:19], 0 offen offset:0")
        if j < 4:
            k("v_add_u32 v7, 0x1000, v7")
    k.label("k1_end")
    k("s_endpgm")
    return k

def ln_rows(k, X, n, tmp, sa):
    k(f"v_add_f32 v{tmp}, v{X}, v{X+1}")
    for j in range(2, 9):
        k(f"v_add_f32 v{tmp}, v{tmp}, v{X+j}")
    wave_sum(k, tmp, sa)
    k(f"v_mul_f32 v{tmp}, {f2h(1.0/576)}, v{tmp}")
    for j in range(9):
        k(f"v_sub_f32 v{X+j}, v{X+j}, v{tmp}")
    k(f"v_mul_f32 v{tmp}, v{X}, v{X}")
    for j in range(1, 9):
        k(f"v_fmac_f32 v{tmp}, v{X+j}, v{X+j}")
    wave_sum(k, tmp, sa)
    k(f"v_mov_b32 v{tmp+1}, {f2h(1e-5)}")
    k(f"v_fmac_f32 v{tmp+1}, {f2h(1.0/576)}, v{tmp}")
    k(f"v_rsq_f32 v{tmp+1}, v{tmp+1}")
    k("s_nop 0")
    for j in range(9):
        k(f"v_mul_f32 v{X+j}, v{X+j}, v{tmp+1}")

def load_mod(k, dst, col0, voff):
    for ks in range(4):
        for j in range(9):
            off = WS_MOD + ks*4*3456*4 + col0*4 + 256*j
            k(f"s_add_u32 s30, s8, {off}")
            k("s_addc_u32 s31, s9, 0")
            k(f"global_load_dword v{dst+ks*9+j}, v{voff}, s[30:31]")

def sum_mod(k, dst):
    for ks in range(1, 4):
        for j in range(9):
            k(f"v_add_f32 v{dst+j}, v{dst+j}, v{dst+ks*9+j}")

def k2():
    k = Kern("k2_q_kernel")
    k("""s_load_dwordx2 s[4:5], s[0:1], 0
         s_load_dwordx2 s[6:7], s[0:1], 24
         s_load_dwordx2 s[8:9], s[0:1], 104
         s_cmp_ge_u32 s2, 128
         s_cbranch_scc1 k2_end
         s_and_b32 s24, s2, 3
         s_lshr_b32 s25, s2, 2
         v_and_b32 v1, 15, v0
         v_lshrrev_b32 v2, 4, v0
         v_lshrrev_b32 v5, 6, v0
         v_and_b32 v6, 63, v0
         s_waitcnt lgkmcnt(0)""")
    srd(k, 12, 6, 576*8192)
    k("v_mul_u32_u24 v7, 576, v5")
    k("v_add_u32 v7, v7, v6")
    k("v_lshlrev_b32 v7, 1, v7")
    for j in range(9):
        k(f"global_load_ushort v{32+j}, v7, s[4:5] offset:{128*j}")
    k("v_mul_u32_u24 v7, 3456, v5")
    k("v_add_u32 v7, v7, v6")
    k("v_lshlrev_b32 v7, 2, v7")
    load_mod(k, 160, 0, 7)
    load_mod(k, 200, 576, 7)
    weights128_issue(k, 12, 8192)
    k("s_waitcnt vmcnt(9)")
    for j in range(9):
        k(f"v_lshlrev_b32 v{32+j}, 16, v{32+j}")
    sum_mod(k, 160)
    sum_mod(k, 200)
    ln_rows(k, 32, 9, 48, 40)
    for j in range(9):
        k(f"v_add_f32 v{200+j}, 1.0, v{200+j}")
        k(f"v_fma_f32 v{32+j}, v{32+j}, v{200+j}, v{160+j}")
    k("v_lshlrev_b32 v7, 4, v6")
    k("v_lshl_add_u32 v7, v5, 2, v7")
    for j in range(9):
        k(f"ds_write_b32 v7, v{32+j} offset:{1024*j}")
    gemv128_tail(k, 4096, WS_Q)
    k.label("k2_end")
    k("s_endpgm")
    return k

def k3():
    k = Kern("k3_attn_kernel")
    k.nv = 128
    NB = KEYS_PER_WG // 4 // 16
    k(f"""s_load_dwordx2 s[4:5], s[0:1], 8
         s_load_dwordx2 s[6:7], s[0:1], 16
         s_load_dwordx2 s[8:9], s[0:1], 104
         s_cmp_ge_u32 s2, {128*NSPLIT}
         s_cbranch_scc1 k3_end
         v_lshrrev_b32 v5, 6, v0
         v_and_b32 v6, 63, v0
         s_nop 0
         v_readfirstlane_b32 s20, v5
         s_lshr_b32 s21, s2, {NSPLIT.bit_length()-1}
         s_and_b32 s22, s2, {NSPLIT-1}
         s_lshl_b32 s23, s21, 20
         s_mul_i32 s24, s22, {KEYS_PER_WG*256}
         s_add_u32 s23, s23, s24
         s_mul_i32 s24, s20, {KEYS_PER_WG*64}
         s_add_u32 s23, s23, s24
         s_waitcnt lgkmcnt(0)
         s_add_u32 s4, s4, s23
         s_addc_u32 s5, s5, 0
         s_add_u32 s6, s6, s23
         s_addc_u32 s7, s7, 0
         v_lshlrev_b32 v1, 4, v6
         s_lshr_b32 s24, s2, 3
         s_add_u32 s24, s24, s2
         s_add_u32 s24, s24, s20
         s_and_b32 s24, s24, 7
         s_lshl_b32 s24, s24, 12
         v_add_u32 v1, s24, v1""")
    def ldK(buf, voff_extra=0):
        for r in range(4):
            k(f"global_load_dwordx4 v[{buf+4*r}:{buf+4*r+3}], v1, s[4:5] offset:{1024*r} nt")
    def ldV(buf):
        for r in range(4):
            k(f"global_load_dwordx4 v[{buf+4*r}:{buf+4*r+3}], v1, s[6:7] offset:{1024*r} nt")
    KA, KB, VA, VB = 32, 48, 64, 80
    k("v_and_b32 v2, 15, v6")
    k("v_lshlrev_b32 v2, 5, v2")
    k("s_lshl_b32 s25, s21, 9")
    k(f"s_add_u32 s25, s25, {WS_Q}")
    k("s_add_u32 s26, s8, s25")
    k("s_addc_u32 s27, s9, 0")
    for ks in range(4):
        k(f"global_load_dwordx4 v[{96+8*ks}:{99+8*ks}], v2, s[26:27]")
        k(f"global_load_dwordx4 v[{100+8*ks}:{103+8*ks}], v2, s[26:27] offset:16")
        if ks < 3:
            k(f"s_add_u32 s26, s26, {4*4096*4}")
            k("s_addc_u32 s27, s27, 0")
    ldK(KA); ldV(VA)
    k("v_add_u32 v1, 0x1000, v1\nv_and_b32 v1, 0x7fff, v1")
    ldK(KB); ldV(VB)
    k("v_add_u32 v1, 0x1000, v1\nv_and_b32 v1, 0x7fff, v1")
    k("s_waitcnt vmcnt(16)")
    for j in range(8):
        k(f"v_add_f32 v{8+j}, v{96+j}, v{104+j}")
        k(f"v_add_f32 v{112+j}, v{112+j}, v{120+j}")
        k(f"v_add_f32 v{8+j}, v{8+j}, v{112+j}")
        k(f"v_mul_f32 v{8+j}, {f2h(QSCALE)}, v{8+j}")
        k(f"v_mov_b32 v{16+j}, 0")
    k("v_mov_b32 v24, 0xff800000")
    k("v_mov_b32 v25, 0")
    S = 96
    for blk in range(NB):
        KBUF = KA if blk % 2 == 0 else KB
        VBUF = VA if blk % 2 == 0 else VB
        pre = blk + 2 < NB
        nxt = 8 if blk + 1 < NB else 0
        k(f"s_waitcnt vmcnt({4 + nxt})")
        for j in range(8):
            for r in range(4):
                w = KBUF + 4*r + j//2
                t = 100 + r
                if j % 2 == 0:
                    k(f"v_lshlrev_b32 v{t}, 16, v{w}")
                else:
                    k(f"v_and_b32 v{t}, 0xffff0000, v{w}")
                if j == 0:
                    k(f"v_mul_f32 v{S+r}, v{8+j}, v{t}")
                else:
                    k(f"v_fmac_f32 v{S+r}, v{8+j}, v{t}")
        if pre:
            ldK(KBUF)
        row16_allreduce(k, [S, S+1, S+2, S+3])
        k(f"v_max3_f32 v104, v{S}, v{S+1}, v24")
        k(f"v_max3_f32 v104, v{S+2}, v{S+3}, v104")
        k("v_sub_f32 v105, v24, v104")
        k("v_exp_f32 v105, v105")
        for r in range(4):
            k(f"v_sub_f32 v{S+r}, v{S+r}, v104")
        for r in range(4):
            k(f"v_exp_f32 v{S+r}, v{S+r}")
        k("v_mov_b32 v24, v104")
        k("v_mul_f32 v25, v25, v105")
        for j in range(8):
            k(f"v_mul_f32 v{16+j}, v{16+j}, v105")
        for r in range(4):
            k(f"v_add_f32 v25, v25, v{S+r}")
        nk = 4 if pre else 0
        k(f"s_waitcnt vmcnt({nxt + nk})")
        for r in range(4):
            for j in range(8):
                w = VBUF + 4*r + j//2
                t = 100 + (j % 4)
                if j % 2 == 0:
                    k(f"v_lshlrev_b32 v{t}, 16, v{w}")
                else:
                    k(f"v_and_b32 v{t}, 0xffff0000, v{w}")
                k(f"v_fmac_f32 v{16+j}, v{S+r}, v{t}")
        if pre:
            ldV(VBUF)
            k("v_add_u32 v1, 0x1000, v1\nv_and_b32 v1, 0x7fff, v1")
    k("v_lshrrev_b32 v2, 4, v0")
    k("v_and_b32 v3, 15, v0")
    k("v_lshlrev_b32 v4, 9, v2")
    k("v_lshl_add_u32 v4, v3, 5, v4")
    k("ds_write_b128 v4, v[16:19]")
    k("ds_write_b128 v4, v[20:23] offset:16")
    k("v_lshlrev_b32 v4, 3, v2")
    k("v_cmp_eq_u32 vcc, 0, v3")
    k("s_and_saveexec_b64 s[30:31], vcc")
    k("ds_write_b64 v4, v[24:25] offset:8192")
    k("s_mov_b64 exec, s[30:31]")
    k("s_waitcnt lgkmcnt(0)")
    k("s_barrier")
    k("v_cmp_gt_u32 vcc, 128, v0")
    k("s_and_saveexec_b64 s[30:31], vcc")
    k("s_cbranch_execz k3_end")
    k("v_mov_b32 v4, 0")
    for i in range(16):
        k(f"ds_read_b64 v[{32+2*i}:{33+2*i}], v4 offset:{8192+8*i}")
    k("v_lshlrev_b32 v5, 2, v0")
    for i in range(16):
        k(f"ds_read_b32 v{64+i}, v5 offset:{512*i}")
    k("s_waitcnt lgkmcnt(0)")
    k("v_max_f32 v8, v32, v34")
    for i in range(2, 16):
        k(f"v_max_f32 v8, v8, v{32+2*i}")
    for i in range(16):
        k(f"v_sub_f32 v{32+2*i}, v{32+2*i}, v8")
    for i in range(16):
        k(f"v_exp_f32 v{32+2*i}, v{32+2*i}")
    k("v_mov_b32 v9, 0\nv_mov_b32 v10, 0")
    for i in range(16):
        k(f"v_fmac_f32 v9, v{32+2*i}, v{33+2*i}")
        k(f"v_fmac_f32 v10, v{32+2*i}, v{64+i}")
    k("s_mul_i32 s25, s2, 528")
    k(f"s_add_u32 s25, s25, {WS_PART}")
    k("s_add_u32 s26, s8, s25")
    k("s_addc_u32 s27, s9, 0")
    k("global_store_dword v5, v10, s[26:27] offset:16")
    k("v_cmp_eq_u32 vcc, 0, v0")
    k("s_and_saveexec_b64 s[28:29], vcc")
    k("global_store_dwordx2 v4, v[8:9], s[26:27]")
    k.label("k3_end")
    k("s_endpgm")
    return k

def div72(k, dst_q, dst_r, src):
    k(f"v_mul_u32_u24 v{dst_q}, 911, v{src}")
    k(f"v_lshrrev_b32 v{dst_q}, 16, v{dst_q}")
    k(f"v_mul_u32_u24 v{dst_r}, 72, v{dst_q}")
    k(f"v_sub_u32 v{dst_r}, v{src}, v{dst_r}")

def red576_atomic(k, ACC, lds_red, ws_acc, rg, jj):
    k(f"v_mul_u32_u24 v3, {4*576*4}, v{rg}")
    k(f"v_lshl_add_u32 v3, v{jj}, 5, v3")
    for b in range(4):
        k(f"ds_write_b128 v3, v[{ACC+b*8}:{ACC+b*8+3}] offset:{lds_red+b*2304}")
        k(f"ds_write_b128 v3, v[{ACC+b*8+4}:{ACC+b*8+7}] offset:{lds_red+b*2304+16}")
    k("s_waitcnt lgkmcnt(0)")
    k("s_barrier")
    k(f"v_mul_u32_u24 v3, 2304, v{rg}")
    k(f"v_lshl_add_u32 v3, v{jj}, 5, v3")
    for g in range(4):
        k(f"ds_read_b128 v[{ACC+g*8}:{ACC+g*8+3}], v3 offset:{lds_red+g*9216}")
        k(f"ds_read_b128 v[{ACC+g*8+4}:{ACC+g*8+7}], v3 offset:{lds_red+g*9216+16}")
    k("s_waitcnt lgkmcnt(0)")
    for g in range(1, 4):
        for j in range(8):
            k(f"v_add_f32 v{ACC+j}, v{ACC+j}, v{ACC+g*8+j}")
    k("s_mul_i32 s29, s2, 9216")
    k(f"s_add_u32 s29, s29, {ws_acc}")
    k("s_add_u32 s30, s8, s29")
    k("s_addc_u32 s31, s9, 0")
    k(f"global_store_dwordx4 v3, v[{ACC}:{ACC+3}], s[30:31]")
    k(f"global_store_dwordx4 v3, v[{ACC+4}:{ACC+7}], s[30:31] offset:16")

def k4():
    k = Kern("k4_wo_kernel")
    k("""s_load_dwordx2 s[6:7], s[0:1], 32
         s_load_dwordx2 s[8:9], s[0:1], 104
         s_cmp_ge_u32 s2, 64
         s_cbranch_scc1 k4_end
         s_lshr_b32 s20, s2, 1
         s_and_b32 s21, s2, 1
         s_waitcnt lgkmcnt(0)""")
    div72(k, 1, 2, 0)
    k("s_lshl_b32 s22, s2, 6")
    k("s_mul_i32 s22, s22, 1152")
    k("s_add_u32 s6, s6, s22")
    k("s_addc_u32 s7, s7, 0")
    k("v_lshlrev_b32 v3, 4, v0")
    k("v_lshrrev_b32 v4, 6, v0")
    k("v_and_b32 v5, 63, v0")
    k("v_cmp_gt_u32 vcc, 256, v0")
    k("s_and_saveexec_b64 s[30:31], vcc")
    k("s_cbranch_execz k4_skip1")
    k(f"v_mul_u32_u24 v6, {32*NSPLIT*528}, v4")
    k(f"s_mul_i32 s23, s20, {NSPLIT*528}")
    k(f"s_add_u32 s23, s23, {WS_PART}")
    k("s_add_u32 s24, s8, s23")
    k("s_addc_u32 s25, s9, 0")
    k("s_lshl_b32 s26, s21, 8")
    k("v_lshl_add_u32 v7, v5, 2, v6")
    k("v_add_u32 v7, s26, v7")
    for s in range(NSPLIT):
        k(f"global_load_dwordx2 v[{32+2*s}:{33+2*s}], v6, s[24:25] offset:{528*s}")
        k(f"global_load_dword v{48+s}, v7, s[24:25] offset:{528*s+16}")
    k("s_waitcnt vmcnt(0)")
    k("v_max_f32 v8, v32, v34")
    for s in range(2, NSPLIT):
        k(f"v_max_f32 v8, v8, v{32+2*s}")
    for s in range(NSPLIT):
        k(f"v_sub_f32 v{32+2*s}, v{32+2*s}, v8")
    for s in range(NSPLIT):
        k(f"v_exp_f32 v{32+2*s}, v{32+2*s}")
    k("v_mov_b32 v9, 0\nv_mov_b32 v10, 0")
    for s in range(NSPLIT):
        k(f"v_fmac_f32 v9, v{32+2*s}, v{33+2*s}")
        k(f"v_fmac_f32 v10, v{32+2*s}, v{48+s}")
    k("v_rcp_f32 v9, v9")
    k("s_nop 0")
    k("v_mul_f32 v10, v10, v9")
    k("v_lshlrev_b32 v6, 4, v5")
    k("v_lshl_add_u32 v6, v4, 2, v6")
    k("ds_write_b32 v6, v10")
    k.label("k4_skip1")
    k("s_mov_b64 exec, s[30:31]")
    for i in range(16):
        k(f"global_load_dwordx4 v[{64+4*i}:{67+4*i}], v3, s[6:7] nt")
        if i < 15:
            k("s_add_u32 s6, s6, 4608")
            k("s_addc_u32 s7, s7, 0")
    k("s_waitcnt lgkmcnt(0)")
    k("s_barrier")
    k("v_lshlrev_b32 v4, 4, v1")
    for i in range(16):
        k(f"ds_read_b128 v[{160+4*i}:{163+4*i}], v4 offset:{64*i}")
    k("s_waitcnt lgkmcnt(0)")
    gemv_fma(k, 64, 160, 128, 16, 0)
    red576_atomic(k, 128, 0x1000, WS_P1, 1, 2)
    k.label("k4_end")
    k("s_endpgm")
    return k

def k5():
    k = Kern("k5_ffn_kernel")
    k("""s_load_dwordx2 s[4:5], s[0:1], 0
         s_load_dwordx2 s[10:11], s[0:1], 48
         s_load_dwordx2 s[12:13], s[0:1], 56
         s_load_dwordx2 s[14:15], s[0:1], 64
         s_load_dwordx2 s[8:9], s[0:1], 104
         s_cmp_ge_u32 s2, 144
         s_cbranch_scc1 k5_end
         v_lshrrev_b32 v5, 6, v0
         v_and_b32 v6, 63, v0
         s_waitcnt lgkmcnt(0)""")
    div72(k, 1, 2, 0)
    k("v_cmp_gt_u32 vcc, 256, v0")
    k("s_and_saveexec_b64 s[34:35], vcc")
    k("s_cbranch_execz k5_skip1")
    k("v_mul_u32_u24 v7, 576, v5")
    k("v_add_u32 v7, v7, v6")
    k("v_lshlrev_b32 v3, 1, v7")
    for j in range(9):
        k(f"global_load_ushort v{32+j}, v3, s[4:5] offset:{128*j}")
    k("v_lshlrev_b32 v3, 2, v7")
    k(f"s_add_u32 s30, s8, {WS_ACC1}")
    k("s_addc_u32 s31, s9, 0")
    for j in range(9):
        k(f"global_load_dword v{44+j}, v3, s[30:31] offset:{256*j}")
    k("v_mul_u32_u24 v7, 3456, v5")
    k("v_add_u32 v7, v7, v6")
    k("v_lshlrev_b32 v7, 2, v7")
    load_mod(k, 100, 1152, 7)
    load_mod(k, 140, 1728, 7)
    load_mod(k, 180, 2304, 7)
    k("s_waitcnt vmcnt(0)")
    sum_mod(k, 100); sum_mod(k, 140); sum_mod(k, 180)
    for j in range(9):
        k(f"v_lshlrev_b32 v{32+j}, 16, v{32+j}")
        k(f"v_fmac_f32 v{32+j}, v{100+j}, v{44+j}")
    ln_rows(k, 32, 9, 60, 40)
    for j in range(9):
        k(f"v_add_f32 v{180+j}, 1.0, v{180+j}")
        k(f"v_fma_f32 v{32+j}, v{32+j}, v{180+j}, v{140+j}")
    k("v_lshlrev_b32 v7, 4, v6")
    k("v_lshl_add_u32 v7, v5, 2, v7")
    for j in range(9):
        k(f"ds_write_b32 v7, v{32+j} offset:{1024*j}")
    k.label("k5_skip1")
    k("s_mov_b64 exec, s[34:35]")
    k("v_lshrrev_b32 v4, 2, v0")
    k("v_and_b32 v7, 3, v0")
    k("s_mov_b32 s27, 9216")
    k("v_mul_lo_u32 v3, v4, s27")
    k("v_lshl_add_u32 v3, v7, 4, v3")
    k("s_lshl_b32 s20, s2, 6")
    k("s_add_u32 s10, s10, s20\ns_addc_u32 s11, s11, 0")
    k("s_add_u32 s12, s12, s20\ns_addc_u32 s13, s13, 0")
    for i in range(8):
        k(f"global_load_dwordx4 v[{64+4*i}:{67+4*i}], v3, s[10:11] nt")
        k(f"global_load_dwordx4 v[{96+4*i}:{99+4*i}], v3, s[12:13] nt")
        if i < 7:
            k(f"s_add_u32 s10, s10, {72*9216}\ns_addc_u32 s11, s11, 0")
            k(f"s_add_u32 s12, s12, {72*9216}\ns_addc_u32 s13, s13, 0")
    k("s_waitcnt lgkmcnt(0)")
    k("s_barrier")
    k("v_lshlrev_b32 v3, 4, v4")
    for i in range(8):
        k(f"ds_read_b128 v[{32+4*i}:{35+4*i}], v3 offset:{72*16*i}")
    k("s_waitcnt lgkmcnt(0)")
    T = 250
    for i in range(8):
        for gu, (W, ACC) in enumerate(((64, 128), (96, 160))):
            k(f"s_waitcnt vmcnt({15 - 2*i - gu})")
            for d in range(4):
                w = W + 4*i + d
                k(f"v_lshlrev_b32 v{T}, 16, v{w}")
                k(f"v_and_b32 v{T+1}, 0xffff0000, v{w}")
                for b in range(4):
                    a = 32 + 4*i + b
                    op = "v_mul_f32" if i == 0 else "v_fmac_f32"
                    k(f"{op} v{ACC+b*8+2*d}, v{a}, v{T}")
                    k(f"{op} v{ACC+b*8+2*d+1}, v{a}, v{T+1}")
    k("s_mul_i32 s20, s2, 36864")
    k("s_add_u32 s14, s14, s20\ns_addc_u32 s15, s15, 0")
    k("v_lshlrev_b32 v3, 4, v0")
    for i in range(8):
        k(f"global_load_dwordx4 v[{64+4*i}:{67+4*i}], v3, s[14:15] nt")
        if i < 7:
            k("s_add_u32 s14, s14, 4608\ns_addc_u32 s15, s15, 0")
    RED = 0x3000
    k("v_lshlrev_b32 v3, 10, v4")
    k("v_lshl_add_u32 v3, v7, 5, v3")
    for gu in range(2):
        for b in range(4):
            r = 128 + gu*32 + b*8
            k(f"ds_write_b128 v3, v[{r}:{r+3}] offset:{RED+gu*512+b*128}")
            k(f"ds_write_b128 v3, v[{r+4}:{r+7}] offset:{RED+gu*512+b*128+16}")
    k("s_waitcnt lgkmcnt(0)")
    k("s_barrier")
    k("v_cmp_gt_u32 vcc, 256, v0")
    k("s_and_saveexec_b64 s[34:35], vcc")
    k("s_cbranch_execz k5_skip2")
    k("v_lshlrev_b32 v3, 2, v0")
    k(f"v_add_u32 v11, {RED+1024*36}, v3")
    for g in range(72):
        if g < 36:
            k(f"ds_read_b32 v{128+g}, v3 offset:{RED+1024*g}")
        else:
            k(f"ds_read_b32 v{128+g}, v11 offset:{1024*(g-36)}")
    k("s_waitcnt lgkmcnt(0)")
    for g in range(1, 72):
        k(f"v_add_f32 v128, v128, v{128+g}")
    S2 = 0x2800
    k(f"ds_write_b32 v3, v128 offset:{S2}")
    k.label("k5_skip2")
    k("s_mov_b64 exec, s[34:35]")
    k("s_waitcnt lgkmcnt(0)")
    k("s_barrier")
    k("v_cmp_gt_u32 vcc, 128, v0")
    k("s_and_saveexec_b64 s[34:35], vcc")
    k("s_cbranch_execz k5_skip3")
    k(f"ds_read_b32 v8, v3 offset:{S2}")
    k(f"ds_read_b32 v9, v3 offset:{S2+512}")
    k("s_waitcnt lgkmcnt(0)")
    silu(k, 8, 10)
    k("v_mul_f32 v8, v8, v9")
    A2 = 0x2400
    k("v_and_b32 v9, 31, v0")
    k("v_lshrrev_b32 v10, 5, v0")
    k("v_lshlrev_b32 v9, 4, v9")
    k("v_lshl_add_u32 v9, v10, 2, v9")
    k(f"ds_write_b32 v9, v8 offset:{A2}")
    k.label("k5_skip3")
    k("s_mov_b64 exec, s[34:35]")
    k("s_waitcnt lgkmcnt(0)")
    k("s_barrier")
    k("v_lshlrev_b32 v4, 4, v1")
    for i in range(8):
        k(f"ds_read_b128 v[{32+4*i}:{35+4*i}], v4 offset:{A2+64*i}")
    k("s_waitcnt lgkmcnt(0)")
    gemv_fma(k, 64, 32, 128, 8, 0)
    red576_atomic(k, 128, RED, WS_P2, 1, 2)
    k.label("k5_end")
    k("s_endpgm")
    return k

def k4b():
    k = Kern("k4b_red_kernel")
    k.nv = 96
    k("""s_load_dwordx2 s[8:9], s[0:1], 104
         s_cmp_ge_u32 s2, 4
         s_cbranch_scc1 k4b_end
         s_mul_i32 s20, s2, 576
         v_add_u32 v1, s20, v0
         v_lshlrev_b32 v3, 2, v1
         s_waitcnt lgkmcnt(0)""")
    k(f"s_add_u32 s30, s8, {WS_P1}\ns_addc_u32 s31, s9, 0")
    for i in range(64):
        k(f"global_load_dword v{16+i}, v3, s[30:31]")
        k("s_add_u32 s30, s30, 9216\ns_addc_u32 s31, s31, 0")
    k("s_waitcnt vmcnt(0)")
    for i in range(1, 64):
        k(f"v_add_f32 v16, v16, v{16+i}")
    k(f"s_add_u32 s30, s8, {WS_ACC1}\ns_addc_u32 s31, s9, 0")
    k("global_store_dword v3, v16, s[30:31]")
    k.label("k4b_end")
    k("s_endpgm")
    return k

def k6():
    k = Kern("k6_fin_kernel")
    k.nv = 176
    k("""s_load_dwordx2 s[4:5], s[0:1], 0
         s_load_dwordx2 s[6:7], s[0:1], 88
         s_load_dwordx2 s[8:9], s[0:1], 104
         s_cmp_ge_u32 s2, 8
         s_cbranch_scc1 k6_end
         s_waitcnt lgkmcnt(0)""")
    k("s_mul_i32 s20, s2, 288")
    k("v_add_u32 v1, s20, v0")
    k("v_lshlrev_b32 v2, 1, v1")
    k("global_load_ushort v8, v2, s[4:5]")
    k("v_lshlrev_b32 v3, 2, v1")
    k(f"s_add_u32 s30, s8, {WS_ACC1}\ns_addc_u32 s31, s9, 0")
    k("global_load_dword v9, v3, s[30:31]")
    k("global_load_dword v10, v3, s[30:31] offset:0")
    k(f"s_add_u32 s30, s8, {WS_P2}\ns_addc_u32 s31, s9, 0")
    for i in range(144):
        k(f"global_load_dword v{32+i}, v3, s[30:31]")
        k("s_add_u32 s30, s30, 9216\ns_addc_u32 s31, s31, 0")
    k("s_lshr_b32 s21, s2, 1\ns_mul_i32 s20, s21, 3456\ns_and_b32 s21, s2, 1\ns_mul_i32 s21, s21, 288\ns_add_u32 s20, s20, s21")
    k("v_add_u32 v4, s20, v0")
    k("v_lshlrev_b32 v4, 2, v4")
    for ks in range(4):
        for i, col in enumerate((1152, 2880)):
            off = WS_MOD + ks*4*3456*4 + col*4
            k(f"s_add_u32 s30, s8, {off}\ns_addc_u32 s31, s9, 0")
            k(f"global_load_dword v{16+i*4+ks}, v4, s[30:31]")
    k("s_waitcnt vmcnt(0)")
    for i in range(2):
        for ks in range(1, 4):
            k(f"v_add_f32 v{16+i*4}, v{16+i*4}, v{16+i*4+ks}")
    k("v_mov_b32 v10, v32")
    for i in range(1, 144):
        k(f"v_add_f32 v10, v10, v{32+i}")
    k("v_lshlrev_b32 v8, 16, v8")
    k("v_fmac_f32 v8, v16, v9")
    k("v_fmac_f32 v8, v20, v10")
    k("v_cvt_pk_bf16_f32 v8, v8, v8")
    k("global_store_short v2, v8, s[6:7]")
    k.label("k6_end")
    k("s_endpgm")
    return k

def main():
    ks = [k1(), k2(), k3(), k4(), k4b(), k5(), k6()]
    launches = [("k1_mod_kernel", 108, 256, 49152), ("k2_q_kernel", 128, 256, 49152),
                ("k3_attn_kernel", 128*NSPLIT, 256, 8448), ("k4_wo_kernel", 64, 288, 0x1000+36864),
                ("k4b_red_kernel", 4, 576, 0), ("k5_ffn_kernel", 144, 288, 0x3000+73728), ("k6_fin_kernel", 8, 288, 0)]
    out = []
    for n, g, b, lds in launches:
        out.append(f"; @launch kernel={n} grid=({g},1,1) block=({b},1,1) lds={lds}")
    out.append('.amdgcn_target "amdgcn-amd-amdhsa--gfx950"')
    out.append(".text")
    for k in ks:
        out.append(k.text())
    out.append('.section .rodata,"a"')
    for k in ks:
        out.append(".p2align 6")
        out.append(k.desc())
    open(OUT, "w").write("\n".join(out) + "\n")
    print("wrote", OUT, sum(len(k.l) for k in ks), "lines")

main()
```
